```python
import torch

def _softmax(x, axis=-1):
    return torch.softmax(x, dim=axis)
def _gelu(x):
    return torch.nn.functional.gelu(x, approximate="tanh")
def _silu(x):
    return torch.nn.functional.silu(x)
def _sigmoid(x):
    return torch.sigmoid(x)
def _layernorm(x, axis=-1, eps=1e-5):
    m = x.mean(dim=axis, keepdim=True)
    v = x.var(dim=axis, keepdim=True, unbiased=False)
    return (x - m) / torch.sqrt(v + eps)
def _scatter_add(tgt, idx, src, axis=0):
    return tgt.clone().index_add_(axis, idx, src)
def _segment_sum(src, seg, n):
    out = torch.zeros((n,) + src.shape[1:], dtype=src.dtype)
    return out.index_add_(0, seg, src)
def _pad(x, pw):
    flat = tuple(v for pair in reversed(pw) for v in pair)
    return torch.nn.functional.pad(x, flat)

kernel_name = 'interleave_layers__ssm_conv_h3__dense_activation_squared_relu__prompt'

def setup_inputs():

    _w = (lambda a: (lambda t: t.to(torch.bfloat16) if t.is_floating_point() else t)(torch.as_tensor(a)))
    def _A_setup():
        B, S, D = 1, 2048, 1024
        ks = 4
        return {
            "q": _w((lambda *s: torch.randn(*s, dtype=torch.bfloat16) * 0.05)(B, S, D)),
            "k": _w((lambda *s: torch.randn(*s, dtype=torch.bfloat16) * 0.8)(B, S, D)),
            "v": _w((lambda *s: torch.randn(*s, dtype=torch.bfloat16) * 0.8)(B, S, D)),
            "shift_k": _w((lambda *s: torch.randn(*s, dtype=torch.bfloat16) * 0.8)(D, ks) * 0.5),
            "ssm_k": _w((lambda *s: torch.randn(*s, dtype=torch.bfloat16) * 0.8)(D, S) * (1.0 / S ** 0.5)),
            "ssm_D": _w((lambda *s: torch.randn(*s, dtype=torch.bfloat16) * 0.8)(D)),
        }
    _A_in = _A_setup()

    def _B_setup():
        B, S, D, F = 1, 2048, 1024, 3584
        return {
            "x": _w((lambda *s: torch.randn(*s, dtype=torch.bfloat16) * 0.05)(B, S, D)),
            "w1": _w((lambda *s: torch.randn(*s, dtype=torch.bfloat16) * 0.05)(D, F)),
            "b1": _w((lambda *s: torch.randn(*s, dtype=torch.bfloat16) * 0.4)(F)),
            "w2": _w((lambda *s: torch.randn(*s, dtype=torch.bfloat16) * 0.05)(F, D)),
            "b2": _w((lambda *s: torch.randn(*s, dtype=torch.bfloat16) * 3.2)(D)),
        }
    _B_in = _B_setup()

    return {
        "A_q": _A_in["q"],
        "A_k": _A_in["k"],
        "A_v": _A_in["v"],
        "A_shift_k": _A_in["shift_k"],
        "A_ssm_k": _A_in["ssm_k"],
        "A_ssm_D": _A_in["ssm_D"],
        "B_x": _B_in["x"],
        "B_w1": _B_in["w1"],
        "B_b1": _B_in["b1"],
        "B_w2": _B_in["w2"],
        "B_b2": _B_in["b2"],
    }

def reference(A_q, A_k, A_v, A_shift_k, A_ssm_k, A_ssm_D, B_x, B_w1, B_b1, B_w2, B_b2):
    def _A_ref(q, k, v, shift_k, ssm_k, ssm_D):
        B, S, D = q.shape
        ks = shift_k.shape[-1]
        k_pad = _pad(k, ((0, 0), (ks - 1, 0), (0, 0)))
        k_shift = torch.zeros_like(k)
        for t in range(ks):
            k_shift = k_shift + k_pad[:, t:t + S, :] * shift_k[:, ks - 1 - t][None, None, :]
        kv = k_shift * v
        L = 2 * S
        kv_pad = _pad(kv, ((0, 0), (0, S), (0, 0)))
        kf_pad = _pad(ssm_k, ((0, 0), (0, S)))
        kv_f = (lambda x, axes=(-2,-1): torch.fft.rfft2(x.float(), dim=axes))(kv_pad[:, None, :, :], axes=(1, 2))
        kf_f = (lambda x, axes=(-2,-1): torch.fft.rfft2(x.float(), dim=axes))(kf_pad[:, None, :], axes=(1, 2))
        kf_f = (lambda x, *d: x.permute(*d))(kf_f, 1, 2, 0)
        y_f = kv_f * kf_f[None, :, :, :]
        y = (lambda x, s, axes=(-2,-1): torch.fft.irfft2(x, s=s, dim=axes).to(torch.bfloat16))(y_f, (1, L), axes=(1, 2))[:, 0, :S, :]
        y = y + kv * ssm_D[None, None, :]
        return q * y

    def _B_ref(x, w1, b1, w2, b2):
        h = torch.einsum("bsd,df->bsf", x, w1) + b1
        zero = torch.zeros_like(h)
        r = torch.where(h > zero, h, zero)
        h = r * r
        out = torch.einsum("bsf,fd->bsd", h, w2) + b2
        return out

    x = A_q
    x = x + _A_ref(_layernorm(x, axis=-1), A_k, A_v, A_shift_k, A_ssm_k, A_ssm_D)
    x = x + _B_ref(_layernorm(x, axis=-1), B_w1, B_b1, B_w2, B_b2)
    x = x + _A_ref(_layernorm(x, axis=-1), A_k, A_v, A_shift_k, A_ssm_k, A_ssm_D)
    x = x + _B_ref(_layernorm(x, axis=-1), B_w1, B_b1, B_w2, B_b2)
    return x
```

```python
HEADER = """.amdgcn_target "amdgcn-amd-amdhsa--gfx950"
.text
"""
def kernel_head(name):
    return f".globl {name}\n.p2align 8\n.type {name},@function\n{name}:\n"
def kernel_desc(name, vgpr, accum=None, sgpr=96):
    if accum is None: accum = (vgpr + 3) // 4 * 4
    return f""".p2align 6
.amdhsa_kernel {name}
  .amdhsa_next_free_vgpr {vgpr}
  .amdhsa_next_free_sgpr {sgpr}
  .amdhsa_accum_offset {accum}
  .amdhsa_group_segment_fixed_size 0
  .amdhsa_kernarg_size 112
  .amdhsa_user_sgpr_count 2
  .amdhsa_user_sgpr_kernarg_segment_ptr 1
  .amdhsa_system_sgpr_workgroup_id_x 1
.end_amdhsa_kernel
"""
class Asm:
    def __init__(self): self.l = []
    def __call__(self, s):
        for x in s.strip("\n").split("\n"): self.l.append("    " + x.strip() if not x.strip().endswith(":") else x.strip())
    def text(self): return "\n".join(self.l) + "\n"
def srd(a, d, lo, hi, nbytes):
    a(f"s_mov_b32 s{d}, s{lo}\ns_and_b32 s{d+1}, s{hi}, 0xffff\ns_mov_b32 s{d+2}, {nbytes}\ns_mov_b32 s{d+3}, 0x20000")
def assemble_file(launches, kernels):
    s = ""
    for n, g, b, l in launches: s += f"; @launch kernel={n} grid=({g},1,1) block=({b},1,1) lds={l}\n"
    s += HEADER
    for n, body, d in kernels: s += kernel_head(n) + body
    s += '.section .rodata,"a"\n'
    for n, body, d in kernels: s += d
    return s
```

```python
from common import *
WS_Y=0; WS_W1F=0x400000; WS_W2F=0xC00000; WS_XN=[0x1400000,0x1800000]; WS_X1=0x1C00000; WS_X2=0x2000000; WS_X3=0x2400000; WS_H=[0x2800000,0x3800000]
WS_SIZE=1<<28
UR_STRIDE=4608
HP0=4*UR_STRIDE
HP_C1=4160
HP_STRIDE=8320
CONV_LDS=HP0+4*HP_STRIDE
def gen_conv(name="conv_kernel"):
    a=Asm()
    a(f"s_cmp_ge_u32 s2, 480\ns_cbranch_scc1 L_end_{name}")
    a(f"s_cmp_ge_u32 s2, 256\ns_cbranch_scc1 L_rel_{name}")
    a("s_load_dwordx4 s[4:7], s[0:1], 8\ns_load_dwordx4 s[8:11], s[0:1], 24\ns_load_dwordx2 s[12:13], s[0:1], 40\ns_load_dwordx2 s[14:15], s[0:1], 104")
    a("s_and_b32 s16, s2, 7\ns_lshl_b32 s16, s16, 7\ns_lshr_b32 s17, s2, 3\ns_lshl_b32 s17, s17, 2\ns_add_u32 s16, s16, s17")
    a("v_lshrrev_b32 v1, 6, v0\nv_and_b32 v2, 63, v0\ns_nop 0\nv_readfirstlane_b32 s17, v1")
    a("s_waitcnt lgkmcnt(0)")
    srd(a,20,4,5,1<<22); srd(a,24,6,7,1<<22); srd(a,28,10,11,1<<22); srd(a,32,14,15,WS_SIZE)
    a("s_lshl_b32 s18, s16, 3\ns_add_u32 s8, s8, s18\ns_addc_u32 s9, s9, 0\ns_load_dwordx8 s[36:43], s[8:9], 0")
    a("s_lshl_b32 s18, s16, 1\ns_add_u32 s12, s12, s18\ns_addc_u32 s13, s13, 0\ns_load_dwordx2 s[44:45], s[12:13], 0")
    a("v_lshlrev_b32 v3, 14, v0\ns_lshl_b32 s19, s16, 1")
    a("v_subrev_u32 v4, 6144, v3\nv_and_b32 v4, 0x7fffffff, v4")
    for r in range(3): a(f"v_add_u32 v5, {r*2048}, v4\nbuffer_load_dwordx2 v[{10+2*r}:{11+2*r}], v5, s[20:23], s19 offen")
    for r in range(8):
        if r%2==0: a(f"v_add_u32 v5, {r*2048}, v3")
        a(f"buffer_load_dwordx2 v[{16+2*r}:{17+2*r}], v5, s[20:23], s19 offen offset:{(r%2)*2048}")
        a(f"buffer_load_dwordx2 v[{32+2*r}:{33+2*r}], v5, s[24:27], s19 offen offset:{(r%2)*2048}")
    a("s_add_u32 s46, s16, s17\ns_lshl_b32 s46, s46, 12\nv_lshlrev_b32 v6, 4, v2")
    for it in range(4):
        a(f"buffer_load_dwordx4 v[{48+4*it}:{51+4*it}], v6, s[28:31], s46 offen offset:{it*1024}")
        a(f"buffer_load_dword v{64+it}, v6, s[28:31], s46 offen offset:{it*1024+16}")
    a("v_mov_b32 v70, 0\nv_mov_b32 v71, 0")
    a(f"s_mul_i32 s47, s17, {UR_STRIDE}\nv_lshlrev_b32 v7, 3, v2\nv_add_u32 v7, s47, v7\nds_write_b64 v7, v[70:71] offset:4096")
    a(f"s_mul_i32 s48, s17, {HP_STRIDE}\ns_add_u32 s48, s48, {HP0}")
    a("s_waitcnt lgkmcnt(0)")
    for c in range(4):
        for j in range(4):
            src=36+2*c+j//2
            if j%2==0: a(f"s_lshl_b32 s{52+4*c+j}, s{src}, 16")
            else: a(f"s_and_b32 s{52+4*c+j}, s{src}, 0xffff0000")
    a("s_lshr_b32 s49, s17, 1\ns_cmp_eq_u32 s49, 0\ns_cselect_b32 s49, s44, s45\ns_lshl_b32 s50, s49, 16\ns_and_b32 s49, s49, 0xffff0000\ns_bitcmp1_b32 s17, 0\ns_cselect_b32 s49, s49, s50")
    a("s_waitcnt vmcnt(8)")
    a("v_lshlrev_b32 v8, 4, v0\nv_sub_u32 v8, 4080, v8")
    for c in range(4):
        for r in range(11):
            src=10+2*r+c//2
            a(f"v_lshlrev_b32 v{72+r}, 16, v{src}" if c%2==0 else f"v_and_b32 v{72+r}, 0xffff0000, v{src}")
        for r in range(8):
            src=32+2*r+c//2
            a(f"v_mul_f32 v{84+r}, s{52+4*c+3}, v{72+r}")
            a(f"v_lshlrev_b32 v{92}, 16, v{src}" if c%2==0 else f"v_and_b32 v{92}, 0xffff0000, v{src}")
            a(f"v_fmac_f32 v{84+r}, s{52+4*c+2}, v{73+r}\nv_fmac_f32 v{84+r}, s{52+4*c+1}, v{74+r}\nv_fmac_f32 v{84+r}, s{52+4*c}, v{75+r}")
            a(f"v_mul_f32 v{84+r}, v{84+r}, v92")
        for p in range(4): a(f"v_cvt_pk_bf16_f32 v{96+4*c+p}, v{84+7-2*p}, v{84+6-2*p}")
        a(f"ds_write_b128 v8, v[{96+4*c}:{99+4*c}] offset:{c*UR_STRIDE}")
    a("s_waitcnt vmcnt(0)")
    a("v_add_u32 v9, s48, v6")
    for it in range(4):
        b=48+4*it
        a(f"ds_write_b128 v9, v[{b}:{b+3}] offset:{32+it*1024}")
        a(f"v_alignbit_b32 v112, v{b+1}, v{b}, 16\nv_alignbit_b32 v113, v{b+2}, v{b+1}, 16\nv_alignbit_b32 v114, v{b+3}, v{b+2}, 16\nv_alignbit_b32 v115, v{64+it}, v{b+3}, 16")
        a(f"ds_write_b128 v9, v[112:115] offset:{HP_C1+32+it*1024}")
    a("v_mov_b32 v116, 0\nv_mov_b32 v117, 0\nv_mov_b32 v118, 0\nv_mov_b32 v119, 0\nv_mov_b32 v120, 0\nv_mov_b32 v121, 0\nv_mov_b32 v122, 0\nv_lshlrev_b32 v123, 16, v48")
    a("s_mov_b64 exec, 1")
    a(f"ds_write_b128 v9, v[116:119]\nds_write_b128 v9, v[116:119] offset:16\nds_write_b128 v9, v[116:119] offset:{HP_C1}\nds_write_b128 v9, v[120:123] offset:{HP_C1+16}")
    a("s_mov_b64 exec, -1")
    a("v_and_b32 v3, 15, v2\nv_lshrrev_b32 v4, 4, v2")
    a("v_add_u32 v5, 1, v3\nv_lshrrev_b32 v5, 1, v5\nv_lshl_add_u32 v5, v4, 2, v5\nv_lshlrev_b32 v5, 2, v5")
    a(f"v_and_b32 v6, 1, v3\nv_xor_b32 v6, 1, v6\nv_mul_u32_u24 v6, {HP_C1}, v6\nv_add3_u32 v5, v5, v6, s48")
    for q in range(1,4): a(f"v_add_u32 v{5+q}, {1024*q}, v5")
    a(f"v_lshlrev_b32 v9, 5, v3\nv_sub_u32 v9, {2*2032-512*7}, v9\nv_lshl_add_u32 v9, v4, 4, v9\nv_add_u32 v9, s47, v9")
    ACC=10
    for i in range(32): a(f"v_mov_b32 v{ACC+i}, 0")
    a("s_waitcnt lgkmcnt(0)\ns_barrier")
    FA=[44,108]; FB=[76,140]
    def rd(rho,buf):
        L=[]
        for x in range(8):
            L.append(f"ds_read_b128 v[{FB[buf]+4*x}:{FB[buf]+4*x+3}], v9 offset:{512*(7-x)+64*rho}")
            o=(x%2)*128+16*rho
            L.append(f"ds_read2_b32 v[{FA[buf]+4*x}:{FA[buf]+4*x+1}], v{5+x//2} offset0:{o} offset1:{o+1}")
            L.append(f"ds_read2_b32 v[{FA[buf]+4*x+2}:{FA[buf]+4*x+3}], v{5+x//2} offset0:{o+2} offset1:{o+3}")
        return L
    for s in rd(0,0): a(s)
    for rho in range(8):
        buf=rho&1
        a("s_waitcnt lgkmcnt(0)")
        nxt=rd(rho+1,buf^1) if rho<7 else []
        n=0
        for aa in range(8):
            for b in range(8-aa):
                J=aa+b
                a(f"v_mfma_f32_16x16x32_bf16 v[{ACC+4*J}:{ACC+4*J+3}], v[{FA[buf]+4*aa}:{FA[buf]+4*aa+3}], v[{FB[buf]+4*b}:{FB[buf]+4*b+3}], v[{ACC+4*J}:{ACC+4*J+3}]")
                if n<len(nxt): a(nxt[n]); n+=1
    a(f"v_lshlrev_b32 v44, 5, v3\nv_lshl_add_u32 v44, v4, 3, v44\nv_sub_u32 v44, {2*2044-512*7}, v44\nv_add_u32 v44, s47, v44")
    for J in range(8): a(f"ds_read_b64 v[{48+2*J}:{49+2*J}], v44 offset:{512*(7-J)}")
    a(f"v_lshlrev_b32 v45, 7, v3\nv_lshl_add_u32 v45, v4, 5, v45\ns_lshl_b32 s50, s17, 1\ns_add_u32 s50, s50, {HP0}\nv_add_u32 v45, s50, v45")
    a("s_waitcnt lgkmcnt(0)\ns_barrier")
    for J in range(8):
        k0=48+2*J
        a(f"v_and_b32 v64, 0xffff0000, v{k0+1}\nv_lshlrev_b32 v65, 16, v{k0+1}\nv_and_b32 v66, 0xffff0000, v{k0}\nv_lshlrev_b32 v67, 16, v{k0}")
        for r in range(4): a(f"v_fma_f32 v{64+r}, v{64+r}, s49, v{ACC+4*J+r}")
        a("v_cvt_pk_bf16_f32 v68, v64, v65\nv_cvt_pk_bf16_f32 v69, v66, v67")
        o=J*2048
        a(f"ds_write_b16 v45, v68 offset:{o}\nds_write_b16_d16_hi v45, v68 offset:{o+8}\nds_write_b16 v45, v69 offset:{o+16}\nds_write_b16_d16_hi v45, v69 offset:{o+24}")
    a("s_waitcnt lgkmcnt(0)\ns_barrier")
    a(f"v_lshlrev_b32 v46, 4, v0\nv_add_u32 v46, {HP0}, v46")
    for it in range(4): a(f"ds_read_b128 v[{48+4*it}:{51+4*it}], v46 offset:{it*4096}")
    a("v_lshrrev_b32 v47, 2, v0\nv_lshlrev_b32 v47, 14, v47\nv_and_b32 v64, 3, v0\nv_lshl_add_u32 v47, v64, 4, v47\ns_lshl_b32 s50, s16, 4")
    for it in range(4):
        a(f"s_waitcnt lgkmcnt({3-it})\nbuffer_store_dwordx4 v[{48+4*it}:{51+4*it}], v47, s[32:35], s50 offen\ns_add_u32 s50, s50, {64*16384}")
    a("s_endpgm")
    a(f"L_rel_{name}:")
    a("s_load_dwordx2 s[4:5], s[0:1], 56\ns_load_dwordx2 s[6:7], s[0:1], 72\ns_load_dwordx2 s[14:15], s[0:1], 104")
    a("v_lshrrev_b32 v1, 6, v0\nv_and_b32 v2, 63, v0\ns_nop 0\nv_readfirstlane_b32 s17, v1")
    a("s_sub_u32 s16, s2, 256\ns_lshl_b32 s16, s16, 2\ns_add_u32 s16, s16, s17")
    a("v_and_b32 v3, 15, v2\nv_lshrrev_b32 v4, 4, v2")
    a("s_waitcnt lgkmcnt(0)")
    srd(a,20,4,5,3584*2048); srd(a,24,6,7,3584*2048); srd(a,32,14,15,WS_SIZE)
    a("s_and_b32 s18, s16, 31\ns_lshr_b32 s19, s16, 5")
    a(f"s_mul_i32 s40, s18, {32*7168}\ns_lshl_b32 s41, s19, 8\ns_add_u32 s40, s40, s41")
    a(f"v_mul_u32_u24 v5, {8*7168}, v4\nv_lshl_add_u32 v5, v3, 4, v5")
    for t in range(8): a(f"buffer_load_dwordx4 v[{16+4*t}:{19+4*t}], v5, s[20:23], s40 offen\ns_add_u32 s40, s40, 7168")
    a("s_and_b32 s42, s16, 7\ns_lshr_b32 s43, s16, 3\ns_lshl_b32 s40, s43, 16\ns_lshl_b32 s41, s42, 8\ns_add_u32 s40, s40, s41")
    a("v_lshlrev_b32 v6, 13, v4\nv_lshl_add_u32 v6, v3, 4, v6")
    for t in range(8):
        a(f"s_add_u32 s41, s40, {(16*(t>>2)+(t&3))*2048}\nbuffer_load_dwordx4 v[{48+4*t}:{51+4*t}], v6, s[24:27], s41 offen")
    a("s_lshl_b32 s44, s19, 3\nv_lshrrev_b32 v7, 1, v3\nv_add_u32 v7, s44, v7\nv_mul_u32_u24 v8, 4682, v7\nv_lshrrev_b32 v8, 16, v8")
    a(f"v_mul_u32_u24 v9, {32*14-14}, v8\nv_add_u32 v7, v7, v9\nv_lshlrev_b32 v7, 10, v7\nv_lshl_add_u32 v7, v4, 8, v7\nv_and_b32 v9, 1, v3\nv_lshl_add_u32 v7, v9, 7, v7")
    a(f"s_mul_i32 s44, s18, {14*1024}\ns_add_u32 s44, s44, {WS_W1F}")
    a(f"v_lshrrev_b32 v8, 3, v3\nv_mul_u32_u24 v8, {112*4096}, v8\nv_lshl_add_u32 v8, v9, 11, v8\nv_lshl_add_u32 v8, v4, 8, v8\nv_bfe_u32 v9, v3, 1, 2\nv_lshl_add_u32 v8, v9, 6, v8")
    a(f"s_mul_i32 s45, s42, {2*112*4096}\ns_lshl_b32 s46, s43, 12\ns_add_u32 s45, s45, s46\ns_add_u32 s45, s45, {WS_W2F}")
    a("s_mov_b32 s47, 0x05040100\ns_mov_b32 s48, 0x07060302")
    for which,(base,va,so) in enumerate([(16,7,44),(48,8,45)]):
        a(f"s_waitcnt vmcnt({8 if which==0 else 8})")
        for x in range(8):
            o=80+4*x+32*which
            for p in range(4):
                a(f"v_perm_b32 v{o+p}, v{base+4*(2*p+1)+x//2}, v{base+4*(2*p)+x//2}, s{47+(x&1)}")
            off = 16*x if which==0 else (x>>2)*1024+16*(x&3)
            a(f"buffer_store_dwordx4 v[{o}:{o+3}], v{va}, s[32:35], s{so} offen offset:{off}")
    a(f"L_end_{name}:\ns_endpgm")
    return a.text(), kernel_desc(name,172), (name,480,256,CONV_LDS)
```

```python
import sys
from common import *
from k_conv import *; from k_ln import *; from k_gemm import *
parts=[gen_conv(), gen_ln("ln0_kernel",0), gen_g1("g1a_kernel",0), gen_g2("g2a_kernel",0), gen_ln("ln1_kernel",1), gen_g1("g1b_kernel",1), gen_g2("g2b_kernel",1)]
hdr="".join(l for l in open("interleave_layers__ssm_conv_h3__dense_activation_squared_relu__prompt.s.ref").readlines()[:15])
out=sys.argv[1] if len(sys.argv)>1 else "interleave_layers__ssm_conv_h3__dense_activation_squared_relu__prompt.s"
open(out,"w").write(hdr+assemble_file([p[2] for p in parts],[(p[2][0],p[0],p[1]) for p in parts]))
```

```python
HEADER = """.amdgcn_target "amdgcn-amd-amdhsa--gfx950"
.text
"""
def kernel_head(name):
    return f".globl {name}\n.p2align 8\n.type {name},@function\n{name}:\n"
def kernel_desc(name, vgpr, accum=None, sgpr=96):
    if accum is None: accum = (vgpr + 3) // 4 * 4
    return f""".p2align 6
.amdhsa_kernel {name}
  .amdhsa_next_free_vgpr {vgpr}
  .amdhsa_next_free_sgpr {sgpr}
  .amdhsa_accum_offset {accum}
  .amdhsa_group_segment_fixed_size 0
  .amdhsa_kernarg_size 112
  .amdhsa_user_sgpr_count 2
  .amdhsa_user_sgpr_kernarg_segment_ptr 1
  .amdhsa_system_sgpr_workgroup_id_x 1
.end_amdhsa_kernel
"""
class Asm:
    def __init__(self): self.l = []
    def __call__(self, s):
        for x in s.strip("\n").split("\n"): self.l.append("    " + x.strip() if not x.strip().endswith(":") else x.strip())
    def text(self): return "\n".join(self.l) + "\n"
def srd(a, d, lo, hi, nbytes):
    a(f"s_mov_b32 s{d}, s{lo}\ns_and_b32 s{d+1}, s{hi}, 0xffff\ns_mov_b32 s{d+2}, {nbytes}\ns_mov_b32 s{d+3}, 0x20000")
def assemble_file(launches, kernels):
    s = ""
    for n, g, b, l in launches: s += f"; @launch kernel={n} grid=({g},1,1) block=({b},1,1) lds={l}\n"
    s += HEADER
    for n, body, d in kernels: s += kernel_head(n) + body
    s += '.section .rodata,"a"\n'
    for n, body, d in kernels: s += d
    return s

import os
STAMP=int(os.environ.get("STAMP","0"))
WS_DBG=0x5000000
KIDX={}
def stamp(a,i):
    if STAMP: a(f"s_memrealtime s[{76+2*i}:{77+2*i}]\ns_waitcnt lgkmcnt(0)" if STAMP==1 else f"s_memrealtime s[{76+2*i}:{77+2*i}]")
def stamp_out(a,name,n,sub=0):
    if not STAMP: return
    a(f"s_waitcnt vmcnt(0)\ns_memrealtime s[{76+2*n}:{77+2*n}]\ns_waitcnt lgkmcnt(0)")
    a(f"v_lshrrev_b32 v1, 6, v0\nv_lshlrev_b32 v1, 5, v1\ns_lshl_b32 s74, s2, 8\ns_add_u32 s74, s74, s75\ns_mov_b64 exec, 1")
    for i in range(n+1): a(f"v_mov_b32 v2, s{76+2*i}\nbuffer_store_dword v2, v1, s[32:35], s74 offen offset:{4*i}")
    for i in range(n+1,8): a(f"v_mov_b32 v2, 0\nbuffer_store_dword v2, v1, s[32:35], s74 offen offset:{4*i}")
SC=os.environ.get("SC"," sc1").replace("_"," ")
if SC=="none": SC=""
def stub(name, body, regs):
    return "".join(f"    s_mov_b32 s{r}, {v:#x}\n" for r,v in regs.items())+f"    s_branch {body}\n"
```

```python
from common import *
WS_Y=0; WS_W1F=0x400000; WS_W2F=0xC00000; WS_XN=[0x1400000,0x1800000]; WS_X1=0x1C00000; WS_X2=0x2000000; WS_X3=0x2400000; WS_H=[0x2800000,0x3800000]
WS_SIZE=1<<28
WS_UR=0x4800000; WS_B1F=0x4C00000
UR_STRIDE=4608
HP0=4*UR_STRIDE
HP_C1=4160
HP_STRIDE=8320
CONV_LDS=HP0+4*HP_STRIDE+256
def gen_conv(name="conv_kernel"):
    a=Asm()
    a(f"s_cmp_ge_u32 s2, 480\ns_cbranch_scc1 L_end_{name}")
    stamp(a,0)
    a(f"s_cmp_ge_u32 s2, 256\ns_cbranch_scc1 L_rel_{name}")
    a("s_load_dwordx4 s[8:11], s[0:1], 24\ns_load_dwordx2 s[12:13], s[0:1], 40\ns_load_dwordx2 s[14:15], s[0:1], 104")
    a("s_and_b32 s16, s2, 7\ns_lshl_b32 s16, s16, 7\ns_lshr_b32 s17, s2, 3\ns_lshl_b32 s17, s17, 2\ns_add_u32 s16, s16, s17")
    a("v_lshrrev_b32 v1, 6, v0\nv_and_b32 v2, 63, v0\ns_nop 0\nv_readfirstlane_b32 s17, v1")
    a("s_waitcnt lgkmcnt(0)")
    srd(a,28,10,11,1<<22); srd(a,32,14,15,WS_SIZE)
    a("s_lshl_b32 s18, s16, 1\ns_add_u32 s12, s12, s18\ns_addc_u32 s13, s13, 0\ns_load_dwordx2 s[44:45], s[12:13], 0")
    a("s_add_u32 s19, s16, s17\ns_lshl_b32 s46, s19, 12\nv_lshlrev_b32 v6, 4, v2")
    for it in range(4):
        a(f"buffer_load_dwordx4 v[{48+4*it}:{51+4*it}], v6, s[28:31], s46 offen offset:{it*1024}")
        a(f"buffer_load_dword v{64+it}, v6, s[28:31], s46 offen offset:{it*1024+16}")
    a(f"s_mul_i32 s47, s17, {UR_STRIDE}\ns_lshl_b32 s19, s19, 7\ns_add_u32 s19, s19, {WS_UR}")
    a("v_lshrrev_b32 v3, 3, v2\nv_lshlrev_b32 v3, 17, v3\nv_and_b32 v4, 7, v2\nv_lshl_add_u32 v3, v4, 4, v3")
    for it in range(4):
        a(f"s_add_u32 m0, s47, {it*1024}\ns_nop 0\nbuffer_load_dwordx4 v3, s[32:35], s19 offen lds\ns_add_u32 s19, s19, {8<<17}")
    a("v_mov_b32 v70, 0\nv_mov_b32 v71, 0")
    a(f"v_lshlrev_b32 v7, 3, v2\nv_add_u32 v7, s47, v7\nds_write_b64 v7, v[70:71] offset:4096")
    a(f"s_mul_i32 s48, s17, {HP_STRIDE}\ns_add_u32 s48, s48, {HP0}")
    a("s_waitcnt lgkmcnt(0)")
    a("s_lshr_b32 s49, s17, 1\ns_cmp_eq_u32 s49, 0\ns_cselect_b32 s49, s44, s45\ns_lshl_b32 s50, s49, 16\ns_and_b32 s49, s49, 0xffff0000\ns_bitcmp1_b32 s17, 0\ns_cselect_b32 s49, s49, s50")
    a("s_waitcnt vmcnt(4)")
    a("v_add_u32 v9, s48, v6")
    for it in range(4):
        b=48+4*it
        a(f"ds_write_b128 v9, v[{b}:{b+3}] offset:{32+it*1024}")
        a(f"v_alignbit_b32 v112, v{b+1}, v{b}, 16\nv_alignbit_b32 v113, v{b+2}, v{b+1}, 16\nv_alignbit_b32 v114, v{b+3}, v{b+2}, 16\nv_alignbit_b32 v115, v{64+it}, v{b+3}, 16")
        a(f"ds_write_b128 v9, v[112:115] offset:{HP_C1+32+it*1024}")
    a("v_mov_b32 v116, 0\nv_mov_b32 v117, 0\nv_mov_b32 v118, 0\nv_mov_b32 v119, 0\nv_mov_b32 v120, 0\nv_mov_b32 v121, 0\nv_mov_b32 v122, 0\nv_lshlrev_b32 v123, 16, v48")
    a("s_mov_b64 exec, 1")
    a(f"ds_write_b128 v9, v[116:119]\nds_write_b128 v9, v[116:119] offset:16\nds_write_b128 v9, v[116:119] offset:{HP_C1}\nds_write_b128 v9, v[120:123] offset:{HP_C1+16}")
    a("s_mov_b64 exec, -1")
    a("v_and_b32 v3, 15, v2\nv_lshrrev_b32 v4, 4, v2")
    a("v_add_u32 v5, 1, v3\nv_lshrrev_b32 v5, 1, v5\nv_lshl_add_u32 v5, v4, 2, v5\nv_lshlrev_b32 v5, 2, v5")
    a(f"v_and_b32 v6, 1, v3\nv_xor_b32 v6, 1, v6\nv_mul_u32_u24 v6, {HP_C1}, v6\nv_add3_u32 v5, v5, v6, s48")
    for q in range(1,4): a(f"v_add_u32 v{5+q}, {1024*q}, v5")
    a(f"v_lshlrev_b32 v9, 5, v3\nv_sub_u32 v9, {2*2032-512*7}, v9\nv_lshl_add_u32 v9, v4, 4, v9\nv_add_u32 v9, s47, v9")
    ACC=10
    for i in range(32): a(f"v_mov_b32 v{ACC+i}, 0")
    a("s_waitcnt vmcnt(0) lgkmcnt(0)")
    stamp(a,1)
    FA=[44,108]; FB=[76,140]
    def rd(rho,buf):
        L=[]
        for x in range(8):
            L.append(f"ds_read_b128 v[{FB[buf]+4*x}:{FB[buf]+4*x+3}], v9 offset:{512*(7-x)+64*rho}")
            o=(x%2)*128+16*rho
            L.append(f"ds_read2_b32 v[{FA[buf]+4*x}:{FA[buf]+4*x+1}], v{5+x//2} offset0:{o} offset1:{o+1}")
            L.append(f"ds_read2_b32 v[{FA[buf]+4*x+2}:{FA[buf]+4*x+3}], v{5+x//2} offset0:{o+2} offset1:{o+3}")
        return L
    for s in rd(0,0): a(s)
    a(f"s_mov_b32 s51, 4\nL_cl_{name}:")
    for rho in range(2):
        buf=rho&1
        a("s_waitcnt lgkmcnt(0)")
        nxt=rd(rho+1,buf^1)
        n=0
        for aa in range(8):
            for b in range(8-aa):
                J=aa+b
                a(f"v_mfma_f32_16x16x32_bf16 v[{ACC+4*J}:{ACC+4*J+3}], v[{FA[buf]+4*aa}:{FA[buf]+4*aa+3}], v[{FB[buf]+4*b}:{FB[buf]+4*b+3}], v[{ACC+4*J}:{ACC+4*J+3}]")
                if n<len(nxt): a(nxt[n]); n+=1
                elif rho==1 and n<len(nxt)+5: a(f"v_add_u32 v{5+n-len(nxt)}, 128, v{5+n-len(nxt)}"); n+=1
    a(f"s_sub_u32 s51, s51, 1\ns_cmp_lg_u32 s51, 0\ns_cbranch_scc1 L_cl_{name}")
    a("s_waitcnt lgkmcnt(0)")
    stamp(a,2)
    a(f"v_lshlrev_b32 v44, 5, v3\nv_lshl_add_u32 v44, v4, 3, v44\nv_sub_u32 v44, {2*2044-512*7}, v44\nv_add_u32 v44, s47, v44")
    for J in range(8): a(f"ds_read_b64 v[{48+2*J}:{49+2*J}], v44 offset:{512*(7-J)}")
    a(f"v_lshlrev_b32 v45, 5, v3\nv_lshl_add_u32 v45, v4, 3, v45\nv_add_u32 v45, s48, v45")
    for J in range(8):
        k0=48+2*J
        a(f"s_waitcnt lgkmcnt({7 if J else 7})")
        a(f"v_and_b32 v64, 0xffff0000, v{k0+1}\nv_lshlrev_b32 v65, 16, v{k0+1}\nv_and_b32 v66, 0xffff0000, v{k0}\nv_lshlrev_b32 v67, 16, v{k0}")
        for r in range(4): a(f"v_fma_f32 v{64+r}, v{64+r}, s49, v{ACC+4*J+r}")
        a(f"v_cvt_pk_bf16_f32 v{68+2*J}, v64, v65\nv_cvt_pk_bf16_f32 v{69+2*J}, v66, v67")
        a(f"ds_write_b64 v45, v[{68+2*J}:{69+2*J}] offset:{512*J}")
    a(f"v_lshlrev_b32 v46, 2, v0\nv_add_u32 v46, {HP0}, v46\ns_mov_b32 s52, 0x05040100\ns_mov_b32 s53, 0x07060302")
    a("s_waitcnt lgkmcnt(0)\ns_barrier")
    for it in range(4):
        for c in range(4): a(f"ds_read_b32 v{84+4*it+c}, v46 offset:{c*HP_STRIDE+it*1024}")
    a("v_lshrrev_b32 v47, 2, v0\nv_lshlrev_b32 v47, 14, v47\nv_and_b32 v64, 3, v0\nv_lshl_add_u32 v47, v64, 4, v47\ns_lshl_b32 s50, s16, 4")
    for it in range(4):
        b=84+4*it; o=48+4*it
        a(f"s_waitcnt lgkmcnt({12-4*it})\nv_perm_b32 v{o}, v{b+1}, v{b}, s52\nv_perm_b32 v{o+1}, v{b+3}, v{b+2}, s52\nv_perm_b32 v{o+2}, v{b+1}, v{b}, s53\nv_perm_b32 v{o+3}, v{b+3}, v{b+2}, s53")
        a(f"buffer_store_dwordx4 v[{o}:{o+3}], v47, s[32:35], s50 offen{SC}\ns_add_u32 s50, s50, {64*16384}")
    stamp(a,3); stamp_out(a,name,4)
    a("s_endpgm")
    a(f"L_rel_{name}:")
    rel_w1(a,name); stamp(a,2); stamp_out(a,name,3)
    a(f"L_end_{name}:\ns_endpgm")
    return a.text(), kernel_desc(name,172), (name,480,256,CONV_LDS)

def rel_head(a, off):
    a(f"s_load_dwordx2 s[4:5], s[0:1], {off}\ns_load_dwordx2 s[14:15], s[0:1], 104")
    a("v_lshrrev_b32 v1, 6, v0\nv_and_b32 v2, 63, v0\ns_nop 0\nv_readfirstlane_b32 s17, v1")
    a("s_sub_u32 s16, s2, 256\ns_lshl_b32 s16, s16, 2\ns_add_u32 s16, s16, s17")
    a("v_and_b32 v3, 15, v2\nv_lshrrev_b32 v4, 4, v2\nv_lshlrev_b32 v7, 4, v2")
    a("s_mov_b32 s47, 0x05040100\ns_mov_b32 s48, 0x07060302")
    a("s_waitcnt lgkmcnt(0)")
    srd(a,20,4,5,3584*2048); srd(a,32,14,15,WS_SIZE)
def rel_w2(a):
    rel_head(a,72)
    a("s_and_b32 s42, s16, 7\ns_lshr_b32 s43, s16, 3\ns_lshr_b32 s40, s43, 2\ns_lshl_b32 s40, s40, 18\ns_and_b32 s41, s43, 3\ns_lshl_b32 s41, s41, 12\ns_add_u32 s40, s40, s41\ns_lshl_b32 s41, s42, 8\ns_add_u32 s40, s40, s41")
    a("v_lshlrev_b32 v6, 16, v4\nv_lshl_add_u32 v6, v3, 3, v6")
    for hf in range(2):
        for t in range(8):
            a(f"s_add_u32 s41, s40, {(8*(t&3)+(t>>2))*2048}\nbuffer_load_dwordx2 v[{16+16*hf+2*t}:{17+16*hf+2*t}], v6, s[20:23], s41 offen offset:{128*hf}")
    a(f"s_mul_i32 s45, s42, {2*112*4096}\ns_lshl_b32 s46, s43, 12\ns_add_u32 s45, s45, s46\ns_add_u32 s45, s45, {WS_W2F}")
    for hf in range(2):
        a(f"s_waitcnt vmcnt({8 if hf==0 else 4})")
        if hf==0: stamp(a,1)
        for x in range(4):
            o=48+16*hf+4*x
            for p in range(4): a(f"v_perm_b32 v{o+p}, v{16+16*hf+2*(2*p+1)+x//2}, v{16+16*hf+2*(2*p)+x//2}, s{47+(x&1)}")
            a(f"buffer_store_dwordx4 v[{o}:{o+3}], v7, s[32:35], s45 offen offset:{x*1024}{SC}")
        a(f"s_add_u32 s45, s45, {112*4096}")
def rel_w1(a, name):
    rel_head(a,56)
    a("s_and_b32 s18, s16, 31\ns_lshr_b32 s19, s16, 5")
    a(f"s_mul_i32 s40, s18, {32*7168}\ns_lshl_b32 s41, s19, 8\ns_add_u32 s40, s40, s41")
    a(f"v_mul_u32_u24 v5, {8*7168}, v4\nv_lshl_add_u32 v5, v3, 4, v5")
    for t in range(8): a(f"buffer_load_dwordx4 v[{16+4*t}:{19+4*t}], v5, s[20:23], s40 offen\ns_add_u32 s40, s40, 7168")
    a(f"s_mul_i32 s44, s18, {14*1024}\ns_add_u32 s44, s44, {WS_W1F}\ns_lshl_b32 s45, s19, 3")
    a(f"s_cmp_lg_u32 s18, 0\ns_cbranch_scc1 L_nob_{name}")
    a("s_load_dwordx2 s[6:7], s[0:1], 64\nv_lshlrev_b32 v8, 2, v2\ns_waitcnt lgkmcnt(0)")
    srd(a,24,6,7,7168)
    a("buffer_load_dword v9, v8, s[24:27], s41 offen")
    a(f"v_and_b32 v10, 3, v2\nv_lshlrev_b32 v10, 7, v10\nv_and_b32 v11, 60, v2\nv_add_u32 v10, v10, v11\ns_lshl_b32 s46, s19, 9\ns_add_u32 s46, s46, {WS_B1F}")
    a("s_waitcnt vmcnt(0)\nv_lshlrev_b32 v11, 16, v9\nv_and_b32 v12, 0xffff0000, v9")
    a("buffer_store_dword v11, v10, s[32:35], s46 offen\nbuffer_store_dword v12, v10, s[32:35], s46 offen offset:64")
    a(f"L_nob_{name}:")
    a("s_waitcnt vmcnt(0)"); stamp(a,1)
    for x in range(8):
        o=48+4*x
        a(f"s_add_u32 s46, s45, {x}\ns_mul_i32 s49, s46, 4682\ns_lshr_b32 s49, s49, 16\ns_mul_i32 s49, s49, {32*14-14}\ns_add_u32 s46, s46, s49\ns_lshl_b32 s46, s46, 10\ns_add_u32 s46, s46, s44")
        for p in range(4): a(f"v_perm_b32 v{o+p}, v{16+4*(2*p+1)+x//2}, v{16+4*(2*p)+x//2}, s{47+(x&1)}")
        a(f"buffer_store_dwordx4 v[{o}:{o+3}], v7, s[32:35], s46 offen{SC}")

def gen_prep(name="prep_kernel"):
    a=Asm()
    a(f"s_cmp_ge_u32 s2, 480\ns_cbranch_scc1 L_end_{name}")
    stamp(a,0)
    a(f"s_cmp_ge_u32 s2, 256\ns_cbranch_scc1 L_rel_{name}")
    a("s_load_dwordx4 s[4:7], s[0:1], 8\ns_load_dwordx2 s[8:9], s[0:1], 24\ns_load_dwordx2 s[14:15], s[0:1], 104")
    a("s_and_b32 s16, s2, 7\ns_lshr_b32 s17, s2, 3\nv_and_b32 v1, 31, v0\nv_lshrrev_b32 v2, 5, v0")
    a("s_lshl_b32 s18, s17, 17\nv_lshlrev_b32 v3, 14, v2\nv_lshl_add_u32 v3, v1, 3, v3\nv_add_u32 v3, s18, v3\ns_lshl_b32 s19, s16, 8")
    a("v_subrev_u32 v4, 6144, v3\nv_and_b32 v4, 0x7fffffff, v4\nv_lshlrev_b32 v6, 5, v1\ns_lshl_b32 s36, s16, 10")
    a("s_waitcnt lgkmcnt(0)")
    srd(a,20,4,5,1<<22); srd(a,24,6,7,1<<22); srd(a,28,8,9,8192); srd(a,32,14,15,WS_SIZE)
    a("buffer_load_dwordx4 v[48:51], v6, s[28:31], s36 offen\nbuffer_load_dwordx4 v[52:55], v6, s[28:31], s36 offen offset:16")
    for r in range(3): a(f"v_add_u32 v5, {r*2048}, v4\nbuffer_load_dwordx2 v[{10+2*r}:{11+2*r}], v5, s[20:23], s19 offen")
    for r in range(8):
        if r%2==0: a(f"v_add_u32 v5, {r*2048}, v3")
        a(f"buffer_load_dwordx2 v[{16+2*r}:{17+2*r}], v5, s[20:23], s19 offen offset:{(r%2)*2048}")
        a(f"buffer_load_dwordx2 v[{32+2*r}:{33+2*r}], v5, s[24:27], s19 offen offset:{(r%2)*2048}")
    a("v_mul_u32_u24 v8, 576, v1\nv_lshlrev_b32 v9, 4, v2\nv_sub_u32 v8, v8, v9\nv_add_u32 v8, 112, v8")
    a("s_waitcnt vmcnt(19)")
    for p in range(8): a(f"v_lshlrev_b32 v{56+2*p}, 16, v{48+p}\nv_and_b32 v{57+2*p}, 0xffff0000, v{48+p}")
    a("s_waitcnt vmcnt(0)"); stamp(a,1)
    for c in range(4):
        for r in range(11):
            src=10+2*r+c//2
            a(f"v_lshlrev_b32 v{72+r}, 16, v{src}" if c%2==0 else f"v_and_b32 v{72+r}, 0xffff0000, v{src}")
        for r in range(8):
            src=32+2*r+c//2
            a(f"v_mul_f32 v{84+r}, v{56+4*c+3}, v{72+r}")
            a(f"v_lshlrev_b32 v{92}, 16, v{src}" if c%2==0 else f"v_and_b32 v{92}, 0xffff0000, v{src}")
            a(f"v_fmac_f32 v{84+r}, v{56+4*c+2}, v{73+r}\nv_fmac_f32 v{84+r}, v{56+4*c+1}, v{74+r}\nv_fmac_f32 v{84+r}, v{56+4*c}, v{75+r}")
            a(f"v_mul_f32 v{84+r}, v{84+r}, v92")
        for p in range(4): a(f"v_cvt_pk_bf16_f32 v{96+4*c+p}, v{84+7-2*p}, v{84+6-2*p}")
        a(f"ds_write_b128 v8, v[{96+4*c}:{99+4*c}] offset:{c*144}")
    a("v_lshrrev_b32 v8, 3, v0\nv_mul_u32_u24 v8, 144, v8\nv_and_b32 v9, 7, v0\nv_lshl_add_u32 v8, v9, 4, v8\nv_lshlrev_b32 v9, 4, v0")
    a(f"s_sub_u32 s18, 31, s17\ns_lshl_b32 s18, s18, 17\ns_lshl_b32 s19, s16, 14\ns_add_u32 s18, s18, s19\ns_add_u32 s18, s18, {WS_UR}")
    a("s_waitcnt lgkmcnt(0)\ns_barrier")
    for it in range(4): a(f"ds_read_b128 v[{16+4*it}:{19+4*it}], v8 offset:{it*32*144}")
    for it in range(4): a(f"s_waitcnt lgkmcnt({3-it})\nbuffer_store_dwordx4 v[{16+4*it}:{19+4*it}], v9, s[32:35], s18 offen{SC}\ns_add_u32 s18, s18, 4096")
    stamp(a,2); stamp_out(a,name,3)
    a("s_endpgm")
    a(f"L_rel_{name}:\nL_end_{name}:\ns_endpgm")
    return a.text(), kernel_desc(name,112), (name,256,256,128*144)
```

```python
from common import *
from k_conv import *
MF="v_mfma_f32_16x16x32_bf16"
G1MAP=eval(os.environ.get("G1MAP","(8,4)"))
LSC=os.environ.get("LSC","").replace("_"," ")
def tilemap(a, mtx, ntx):
    import math
    lg=lambda x:int(math.log2(x)); nxn=16//ntx
    a(f"s_and_b32 s18, s2, 7\ns_lshr_b32 s19, s2, 3\ns_lshr_b32 s16, s18, {lg(nxn)}\ns_lshl_b32 s16, s16, {lg(mtx)}\ns_lshr_b32 s17, s19, {lg(ntx)}\ns_add_u32 s16, s16, s17")
    a(f"s_and_b32 s17, s18, {nxn-1}\ns_lshl_b32 s17, s17, {lg(ntx)}\ns_and_b32 s19, s19, {ntx-1}\ns_add_u32 s17, s17, s19")
ST=45056
def g1_setup(a):
    a("s_lshl_b32 s40, s20, 12\ns_mul_i32 s41, s20, 7168")
    a(f"s_lshl_b32 s42, s16, 18\ns_add_u32 s42, s42, s40\ns_add_u32 s42, s42, s61")
    a(f"s_mul_i32 s43, s17, 458752\ns_add_u32 s43, s43, s41\ns_add_u32 s43, s43, {WS_W1F}\ns_add_u32 s41, s41, 16384\ns_mov_b32 s44, 0")
def g1_issue_w():
    L=[f"s_add_u32 m0, s41, s44\ns_add_u32 s45, s43, 4096\nbuffer_load_dwordx4 v3, s[32:35], s43 offen lds"]
    for i in range(1,4): L.append(f"buffer_load_dwordx4 v3, s[32:35], s43 offen offset:{i*1024} lds")
    L.append(f"s_add_u32 m0, m0, 4096\ns_add_u32 s43, s43, 28672\nbuffer_load_dwordx4 v3, s[32:35], s45 offen lds")
    for i in range(1,3): L.append(f"buffer_load_dwordx4 v3, s[32:35], s45 offen offset:{i*1024} lds")
    return L
def g1_issue_x():
    L=[f"s_add_u32 m0, s40, s44\ns_add_u32 s44, s44, {ST}\nbuffer_load_dwordx4 v3, s[32:35], s42 offen lds{LSC}"]
    for i in range(1,4): L.append(f"buffer_load_dwordx4 v3, s[32:35], s42 offen offset:{i*1024} lds{LSC}")
    L[-1]+=f"\ns_add_u32 s42, s42, 16384\ns_cmp_eq_u32 s44, {3*ST}\ns_cselect_b32 s44, 0, s44"
    return L
def w2rel_loads(a, R, name):
    a("s_load_dwordx2 s[4:5], s[0:1], 72\ns_lshl_b32 s46, s2, 2\ns_add_u32 s46, s46, s20\ns_waitcnt lgkmcnt(0)")
    srd(a,28,4,5,3584*2048)
    a("s_and_b32 s47, s46, 7\ns_lshr_b32 s48, s46, 3\ns_lshr_b32 s49, s48, 2\ns_lshl_b32 s49, s49, 18\ns_and_b32 s50, s48, 3\ns_lshl_b32 s50, s50, 12\ns_add_u32 s49, s49, s50\ns_lshl_b32 s50, s47, 8\ns_add_u32 s49, s49, s50")
    a("v_lshrrev_b32 v10, 4, v2\nv_lshlrev_b32 v10, 16, v10\nv_and_b32 v11, 15, v2\nv_lshl_add_u32 v10, v11, 3, v10")
    for hf in range(2):
        for t in range(8):
            a(f"s_add_u32 s50, s49, {(8*(t&3)+(t>>2))*2048}\nbuffer_load_dwordx2 v[{R+16*hf+2*t}:{R+1+16*hf+2*t}], v10, s[28:31], s50 offen offset:{128*hf}")
    a(f"s_mul_i32 s49, s47, {2*112*4096}\ns_lshl_b32 s50, s48, 12\ns_add_u32 s49, s49, s50\ns_add_u32 s49, s49, {WS_W2F}")
    a("s_mov_b32 s47, 0x05040100\ns_mov_b32 s48, 0x07060302")
def w2rel_stores(a, R, O):
    for hf in range(2):
        for x in range(4):
            o=O+16*hf+4*x
            for p in range(4): a(f"v_perm_b32 v{o+p}, v{R+16*hf+2*(2*p+1)+x//2}, v{R+16*hf+2*(2*p)+x//2}, s{47+(x&1)}")
            a(f"buffer_store_dwordx4 v[{o}:{o+3}], v3, s[32:35], s49 offen offset:{x*1024}{SC}")
        a(f"s_add_u32 s49, s49, {112*4096}")
def g1_body(a, name, mega=False):
    P=16; Q=60; BI=104; R=132; O=164
    if mega:
        for s in g1_issue_x()+g1_issue_x()+g1_issue_x(): a(s)
    else:
      a("s_and_b32 s21, s20, 1\ns_lshr_b32 s22, s20, 1")
      a(f"v_lshrrev_b32 v4, 4, v2\nv_lshlrev_b32 v4, 4, v4\ns_mul_i32 s23, s17, 896\ns_mul_i32 s24, s22, 448\ns_add_u32 s23, s23, s24\ns_add_u32 s23, s23, {WS_B1F}")
      for i in range(7): a(f"buffer_load_dwordx4 v[{BI+4*i}:{BI+4*i+3}], v4, s[32:35], s23 offen offset:{64*i}")
      for s in g1_issue_w()+g1_issue_x()+g1_issue_w()+g1_issue_x(): a(s)
    a("s_lshl_b32 s24, s21, 12\ns_mul_i32 s25, s22, 7168\ns_add_u32 s25, s25, 16384")
    a("v_add_u32 v5, s24, v3\nv_add_u32 v8, s25, v3\nv_mov_b32 v6, v5\nv_mov_b32 v9, v8\ns_mov_b32 s36, 0")
    a(f"s_mul_i32 s26, s16, 917504\ns_mul_i32 s27, s17, {7*8192}\ns_add_u32 s26, s26, s27\ns_lshl_b32 s27, s21, 12\ns_add_u32 s26, s26, s27\ns_add_u32 s26, s26, s63")
    def reads(kbl,R):
        w=[f"ds_read_b128 v[{R+16+4*i}:{R+19+4*i}], v9 offset:{kbl*14336+i*1024}" for i in range(7)]
        x=[f"ds_read_b128 v[{R+4*j}:{R+4*j+3}], v6 offset:{kbl*8192+j*1024}" for j in range(4)]
        return [w[0]]+x+w[1:]
    def mfmas(R, extra):
        c=0
        for i in range(7):
            for j in range(4):
                d=4*(4*i+j)
                a(f"{MF} a[{d}:{d+3}], v[{R+16+4*i}:{R+19+4*i}], v[{R+4*j}:{R+4*j+3}], a[{d}:{d+3}]")
                if c in extra: a(extra[c])
                c+=1
    if not mega: a("s_waitcnt vmcnt(22)")
    for i in range(0 if mega else 7):
        for j in range(4):
            for r in range(4): a(f"v_accvgpr_write_b32 a{4*(4*i+j)+r}, v{BI+4*i+r}")
    a(f"s_waitcnt vmcnt({4 if mega else 11})\ns_barrier"); stamp(a,1)
    for s in reads(0,P): a(s)
    for s in ([] if mega else g1_issue_w()+g1_issue_x()): a(s)
    nxt=[f"s_add_u32 s36, s36, {ST}\ns_cmp_eq_u32 s36, {3*ST}\ns_cselect_b32 s36, 0, s36","v_add_u32 v6, s36, v5","v_add_u32 v9, s36, v8"]
    def step(vm, dma, last=False, loop=None):
        a("s_waitcnt lgkmcnt(0)")
        ex=dict(enumerate(reads(1,Q)+([] if last else nxt)))
        d=g1_issue_w()+g1_issue_x() if dma else []
        if not last: ex[17]=f"s_waitcnt vmcnt({vm}) lgkmcnt(0)\ns_barrier"
        for k in range(min(4,len(d))): ex[19+2*k]=d[k]
        mfmas(P, ex)
        if last: a("s_waitcnt lgkmcnt(0)")
        ex=dict(enumerate([] if last else reads(0,P)))
        for k in range(4,len(d)): ex[12+2*(k-4)]=d[k]
        if loop: ex[26]="s_sub_u32 s37, s37, 1\ns_cmp_lg_u32 s37, 0"
        mfmas(Q, ex)
        if loop: a(f"s_cbranch_scc1 {loop}")
    a(f"s_mov_b32 s37, 13\nL_cl_{name}:"); step(11,True,loop=f"L_cl_{name}")
    step(11,False); step(0,False); step(0,False,last=True)
    a("s_nop 7"); stamp(a,3)
    def act(d, T, U):
        for r in range(4): a(f"v_accvgpr_read_b32 v{U+r}, a{d+r}")
        for r in range(4): a(f"v_max_f32 v{U+r}, 0, v{U+r}")
        a(f"v_pk_mul_f32 v[{U}:{U+1}], v[{U}:{U+1}], v[{U}:{U+1}]\nv_pk_mul_f32 v[{U+2}:{U+3}], v[{U+2}:{U+3}], v[{U+2}:{U+3}]")
        a(f"v_cvt_pk_bf16_f32 v{T}, v{U}, v{U+1}\nv_cvt_pk_bf16_f32 v{T+1}, v{U+2}, v{U+3}")
    a(f"s_cmp_eq_u32 s22, 1\ns_cbranch_scc1 L_ep1_{name}")
    for wn in range(2):
        if wn==1: a(f"s_branch L_epd_{name}\nL_ep1_{name}:")
        T=P
        groups=[(0,[0,1]),(1,[2,3]),(2,[4,5]),(3,[6])] if wn==0 else [(3,[0]),(4,[1,2]),(5,[3,4]),(6,[5,6])]
        for u,ii in groups:
            a(f"s_add_u32 s27, s26, {u*8192}")
            for j in range(4):
                for q,i in enumerate(ii): act(4*(4*i+j), T+2*q, BI+4*q)
                if len(ii)==2: a(f"buffer_store_dwordx4 v[{T}:{T+3}], v3, s[32:35], s27 offen offset:{j*1024}{SC}")
                else: a(f"buffer_store_dwordx2 v[{T}:{T+1}], v3, s[32:35], s27 offen offset:{j*1024+8*wn}{SC}")
                T+=4
    a(f"L_epd_{name}:")
def gen_g1(name):
    a=Asm(); a(f"B_{name}:")
    a(f"s_cmp_ge_u32 s2, 256\ns_cbranch_scc1 L_end_{name}")
    stamp(a,0)
    a("s_load_dwordx2 s[14:15], s[0:1], 104")
    a("v_lshrrev_b32 v1, 6, v0\nv_and_b32 v2, 63, v0\nv_lshlrev_b32 v3, 4, v2\nv_readfirstlane_b32 s20, v1")
    tilemap(a,*G1MAP)
    g1_setup(a)
    a("s_waitcnt lgkmcnt(0)")
    srd(a,32,14,15,WS_SIZE)
    g1_body(a,name)
    stamp(a,4); stamp_out(a,name,5)
    a(f"L_end_{name}:\ns_endpgm")
    return a.text(), (196+112,196,256,256,3*ST)

def g2_body(a, name, mega, D=4):
    a("s_load_dwordx4 s[4:7], s[0:1], 80\ns_load_dwordx2 s[14:15], s[0:1], 104\nv_add_u32 v4, 4096, v3")
    a(f"s_mul_i32 s21, s16, 917504\ns_lshl_b32 s23, s20, 13\ns_add_u32 s21, s21, s23\ns_add_u32 s21, s21, s63")
    a(f"s_mul_i32 s22, s17, 458752\ns_lshl_b32 s23, s20, 12\ns_add_u32 s22, s22, s23\ns_add_u32 s22, s22, {WS_W2F}")
    a("s_waitcnt lgkmcnt(0)")
    B0=36
    def loads(buf):
        R=B0+48*buf; L=[]
        for nb in range(4): L.append(f"buffer_load_dwordx4 v[{R+4*nb}:{R+4*nb+3}], v3, s[32:35], s22 offen offset:{nb*1024}")
        for tb in range(8): L.append(f"buffer_load_dwordx4 v[{R+16+4*tb}:{R+19+4*tb}], v{3+tb//4}, s[32:35], s21 offen offset:{(tb%4)*1024}")
        L.append("s_add_u32 s21, s21, 32768\ns_add_u32 s22, s22, 16384")
        return L
    srd(a,28,4,5,2048)
    a(f"s_add_u32 s8, s14, {WS_X2}\ns_addc_u32 s9, s15, 0\ns_cmp_eq_u32 s60, 0\ns_cselect_b32 s6, s8, s6\ns_cselect_b32 s7, s9, s7")
    srd(a,24,6,7,1<<22)
    a("v_and_b32 v5, 15, v2\nv_lshlrev_b32 v5, 11, v5\nv_lshrrev_b32 v6, 4, v2\nv_lshlrev_b32 v6, 5, v6\nv_add_u32 v5, v5, v6\nv_add_u32 v7, 32768, v5")
    a("s_lshl_b32 s36, s16, 18\ns_lshl_b32 s37, s20, 16\ns_add_u32 s36, s36, s37\ns_lshl_b32 s37, s17, 7\ns_add_u32 s36, s36, s37")
    a(f"s_add_u32 s38, s36, s62")
    NI=28
    mega()
    for b in range(D-1):
        for s in loads(b): a(s)
    def body(it):
        buf=it%D; R=B0+48*buf
        rem=min(D-2, NI-1-it)
        ex=loads((it+D-1)%D) if it+D-1<NI else []
        if it==NI-D+1:
            ex=[f"buffer_load_dwordx4 v[8:11], v6, s[28:31], s37 offen",f"buffer_load_dwordx4 v[12:15], v6, s[28:31], s37 offen offset:16"]
            for jj in range(2):
                for h in range(2): ex.append(f"buffer_load_dwordx4 v[{16+8*jj+4*h}:{19+8*jj+4*h}], v{5+2*jj}, s[32:35], s38 offen offset:{16*h} sc1")
        a(f"s_waitcnt vmcnt({12*rem+(6 if it>NI-D+1 else 0)})")
        n=0
        for tb in range(8):
            for nb in range(4):
                d=4*(4*tb+nb)
                a(f"{MF} a[{d}:{d+3}], v[{R+4*nb}:{R+4*nb+3}], v[{R+16+4*tb}:{R+19+4*tb}], a[{d}:{d+3}]")
                if (4*tb+nb)%2==0 and n<len(ex): a(ex[n]); n+=1
    a(f"s_mov_b32 s39, {NI//D-1}\nL_cl_{name}:")
    for it in range(D): body(it)
    a(f"s_sub_u32 s39, s39, 1\ns_cmp_lg_u32 s39, 0\ns_cbranch_scc1 L_cl_{name}")
    for it in range(NI-D,NI): body(it)
    a("s_nop 7"); stamp(a,3)
    OWN=B0
    for o in range(4):
        a(f"s_cmp_eq_u32 s20, {o}\ns_cbranch_scc1 L_own{o}_{name}")
        a(f"s_sub_u32 s23, s20, {o+1}\ns_and_b32 s23, s23, 3\ns_add_u32 s23, s23, {3*o}\ns_lshl_b32 s23, s23, 13\nv_add_u32 v32, s23, v3")
        for t in range(8): a(f"ds_write_b128 v32, a[{32*o+4*t}:{32*o+4*t+3}] offset:{t*1024}")
        a(f"s_branch L_nx{o}_{name}\nL_own{o}_{name}:")
        for t in range(32): a(f"v_accvgpr_read_b32 v{OWN+t}, a{32*o+t}")
        a(f"L_nx{o}_{name}:")
    a("s_mul_i32 s23, s20, 24576\nv_add_u32 v32, s23, v3")
    a("s_waitcnt vmcnt(0)")
    for jj in range(2):
        for p in range(8):
            e=OWN+16*jj+8*(p&1)+(p>>1)
            a(f"v_lshlrev_b32 v33, 16, v{8+p}\nv_and_b32 v34, 0xffff0000, v{8+p}\nv_add_f32 v{e}, v{e}, v33\nv_add_f32 v{e+4}, v{e+4}, v34")
    a("s_waitcnt lgkmcnt(0)\ns_barrier")
    RD=OWN+32
    for t in range(24): a(f"ds_read_b128 v[{RD+4*t}:{RD+4*t+3}], v32 offset:{t*1024}")
    for sl in range(3):
        for t in range(8):
            a(f"s_waitcnt lgkmcnt({min(15,23-8*sl-t)})")
            s=RD+32*sl+4*t; e=OWN+4*t
            a(f"v_pk_add_f32 v[{e}:{e+1}], v[{e}:{e+1}], v[{s}:{s+1}]\nv_pk_add_f32 v[{e+2}:{e+3}], v[{e+2}:{e+3}], v[{s+2}:{s+3}]")
    osrd=24
    for jj in range(2):
        for p in range(8):
            e=OWN+16*jj+8*(p&1)+(p>>1); x=16+8*jj+p
            a(f"v_cvt_pk_bf16_f32 v35, v{e}, v{e+4}\nv_lshlrev_b32 v33, 16, v{x}\nv_and_b32 v34, 0xffff0000, v{x}\nv_lshlrev_b32 v{e}, 16, v35\nv_and_b32 v{e+4}, 0xffff0000, v35")
            a(f"v_add_f32 v33, v33, v{e}\nv_add_f32 v34, v34, v{e+4}\nv_cvt_pk_bf16_f32 v{x}, v33, v34")
        for h in range(2): a(f"buffer_store_dwordx4 v[{16+8*jj+4*h}:{19+8*jj+4*h}], v{5+2*jj}, s[{osrd}:{osrd+3}], s36 offen offset:{16*h}{SC}")
```

```python
import sys
from common import *
from k_conv import *
from k_gemm import *
WS_FLG=0x4D00000; WS_NONCE=0x4D80000
LN_LDS=3*ST
S1=" sc1"
import k_gemm
def stamp(a,i=0):
    if STAMP: a("s_memrealtime s[74:75]\ns_waitcnt lgkmcnt(0)\ns_mov_b32 m0, s76\ns_add_u32 s76, s76, 1\nv_writelane_b32 v1, s74, m0")
k_gemm.stamp=stamp
def signal(a, ph, grp, mem):
    a(f"s_lshl_b32 s66, {grp}, 8\ns_lshl_b32 s67, {mem}, 2\ns_add_u32 s66, s66, s67\ns_add_u32 s66, s66, s65\ns_add_u32 s66, s66, {ph*0x4000}")
    a("s_waitcnt vmcnt(0)\ns_barrier")
    n=f"sg{len(a.l)}"
    a(f"s_cmp_lg_u32 s20, 0\ns_cbranch_scc1 L_{n}\nv_mov_b32 v12, s64\nv_mov_b32 v13, 0\ns_mov_b64 exec, 1\nbuffer_store_dword v12, v13, s[32:35], s66 offen sc1\ns_mov_b64 exec, -1\nL_{n}:")
def wait(a, ph, grp, cnt):
    n=f"wt{len(a.l)}"
    a(f"s_cmp_lg_u32 s20, 0\ns_cbranch_scc1 L_{n}d")
    if grp is None:
        a(f"s_add_u32 s66, s65, {ph*0x4000}\nv_lshrrev_b32 v13, 2, v2\nv_lshlrev_b32 v13, 8, v13\nv_and_b32 v12, 3, v2\nv_lshl_add_u32 v13, v12, 4, v13")
    else:
        a(f"s_lshl_b32 s66, {grp}, 8\ns_add_u32 s66, s66, s65\ns_add_u32 s66, s66, {ph*0x4000}\nv_and_b32 v13, {cnt-1}, v2\nv_lshlrev_b32 v13, 2, v13")
    a(f"s_mov_b32 s67, 0x40000\nL_{n}:")
    if grp is None:
        a("buffer_load_dwordx4 v[8:11], v13, s[32:35], s66 offen sc1\ns_waitcnt vmcnt(0)\nv_xor_b32 v8, s64, v8\nv_xor_b32 v9, s64, v9\nv_xor_b32 v10, s64, v10\nv_xor_b32 v11, s64, v11\nv_or3_b32 v8, v8, v9, v10\nv_or_b32 v12, v8, v11\nv_cmp_ne_u32 vcc, 0, v12")
    else:
        a("buffer_load_dword v12, v13, s[32:35], s66 offen sc1\ns_waitcnt vmcnt(0)\nv_cmp_ne_u32 vcc, s64, v12")
    a(f"s_cmp_eq_u64 vcc, 0\ns_cbranch_scc1 L_{n}d\ns_sub_u32 s67, s67, 1\ns_cmp_lg_u32 s67, 0\ns_cbranch_scc1 L_{n}\nL_{n}d:\ns_barrier")
def unpack(a,dst,src,n):
    for p in range(n): a(f"v_lshlrev_b32 v{dst+2*p}, 16, v{src+p}\nv_and_b32 v{dst+2*p+1}, 0xffff0000, v{src+p}")

def ln_addr(a):
    a("v_and_b32 v27, 7, v2\nv_lshrrev_b32 v28, 3, v2\ns_lshl_b32 s52, s20, 9\nv_lshlrev_b32 v14, 11, v27\nv_lshl_add_u32 v14, v28, 4, v14\nv_add_u32 v14, s52, v14")
    a("s_lshl_b32 s52, s20, 12\nv_lshlrev_b32 v15, 7, v28\nv_lshl_add_u32 v15, v27, 3, v15\nv_add_u32 v15, s52, v15")
    a(f"s_lshl_b32 s52, s20, 2\nv_lshlrev_b32 v24, 5, v27\nv_add_u32 v24, {LN_LDS}, v24\nv_lshrrev_b32 v25, 5, v2\nv_lshl_add_u32 v25, v25, 4, v24\nv_add_u32 v25, s52, v25")
    a("s_lshl_b32 s52, s20, 16\nv_lshrrev_b32 v26, 2, v28\nv_lshlrev_b32 v26, 13, v26\nv_and_b32 v28, 3, v28\nv_lshl_add_u32 v26, v28, 8, v26\nv_lshl_add_u32 v26, v27, 4, v26\nv_add_u32 v26, s52, v26")
    a("s_lshl_b32 s53, s16, 18\ns_lshr_b32 s52, s17, 1\ns_lshl_b32 s52, s52, 10\ns_add_u32 s53, s53, s52\ns_and_b32 s52, s17, 1\ns_lshl_b32 s52, s52, 7\ns_add_u32 s53, s53, s52\ns_add_u32 s53, s53, s61")
    a("s_lshl_b32 s52, s16, 4\ns_add_u32 s52, s52, s17\ns_lshl_b32 s52, s52, 14")
def lnq(a):
    a("s_load_dwordx2 s[4:5], s[0:1], 0"); ln_addr(a); a("s_waitcnt lgkmcnt(0)"); srd(a,24,4,5,1<<22)
    for i in range(4): a(f"buffer_load_dwordx4 v[{64+4*i}:{67+4*i}], v14, s[24:27], s52 offen offset:{128*i}")
def front(a):
    a("s_load_dwordx4 s[4:7], s[0:1], 8\ns_load_dwordx4 s[8:11], s[0:1], 24\ns_load_dwordx2 s[12:13], s[0:1], 40\ns_load_dwordx2 s[14:15], s[0:1], 104\ns_load_dwordx4 s[52:55], s[0:1], 56\ns_load_dwordx2 s[56:57], s[0:1], 72")
    a("v_lshrrev_b32 v4, 6, v0\nv_and_b32 v2, 63, v0\nv_lshlrev_b32 v3, 4, v2\nv_readfirstlane_b32 s20, v4")
    a("s_and_b32 s58, s2, 7\ns_lshr_b32 s59, s2, 3\nv_and_b32 v124, 31, v0\nv_lshrrev_b32 v7, 5, v0")
    a("s_lshl_b32 s18, s59, 17\nv_lshlrev_b32 v9, 14, v7\nv_lshl_add_u32 v9, v124, 3, v9\nv_add_u32 v9, s18, v9\ns_lshl_b32 s19, s58, 8")
    a("v_subrev_u32 v4, 6144, v9\nv_and_b32 v4, 0x7fffffff, v4\nv_lshlrev_b32 v6, 5, v124\ns_lshl_b32 s36, s58, 10")
    a("s_waitcnt lgkmcnt(0)")
    srd(a,40,4,5,1<<22); srd(a,24,6,7,1<<22); srd(a,28,8,9,8192); srd(a,32,14,15,WS_SIZE)
    for r in range(3): a(f"v_add_u32 v5, {r*2048}, v4\nbuffer_load_dwordx2 v[{10+2*r}:{11+2*r}], v5, s[40:43], s19 offen")
    for r in range(8):
        if r%2==0: a(f"v_add_u32 v5, {r*2048}, v9")
        a(f"buffer_load_dwordx2 v[{16+2*r}:{17+2*r}], v5, s[40:43], s19 offen offset:{(r%2)*2048}")
        a(f"buffer_load_dwordx2 v[{32+2*r}:{33+2*r}], v5, s[24:27], s19 offen offset:{(r%2)*2048}")
    a("buffer_load_dwordx4 v[48:51], v6, s[28:31], s36 offen\nbuffer_load_dwordx4 v[52:55], v6, s[28:31], s36 offen offset:16")
    a(f"s_add_u32 s4, s14, {WS_NONCE}\ns_addc_u32 s5, s15, 0\ns_load_dword s64, s[4:5], 0")
    a("s_lshl_b32 s21, s58, 7\ns_lshl_b32 s18, s59, 2\ns_add_u32 s21, s21, s18\ns_lshl_b32 s18, s21, 1\ns_add_u32 s12, s12, s18\ns_addc_u32 s13, s13, 0\ns_load_dwordx2 s[44:45], s[12:13], 0")
    a("s_mov_b32 s68, 0x05040100\ns_mov_b32 s69, 0x07060302\nv_and_b32 v112, 15, v2\nv_lshrrev_b32 v113, 4, v2")
    RL=128
    a("s_cmp_eq_u32 s20, 2\ns_cbranch_scc1 L_w1l\ns_cmp_eq_u32 s20, 3\ns_cbranch_scc1 L_w2l")
    srd(a,28,10,11,1<<22)
    a("s_lshl_b32 s46, s20, 1\ns_add_u32 s46, s46, s21\ns_lshl_b32 s46, s46, 12")
    for cc in range(2):
        for it in range(4):
            a(f"buffer_load_dwordx4 v[{RL+16*cc+4*it}:{RL+3+16*cc+4*it}], v3, s[28:31], s46 offen offset:{it*1024}")
            a(f"buffer_load_dword v{RL+32+4*cc+it}, v3, s[28:31], s46 offen offset:{it*1024+16}")
        a("s_add_u32 s46, s46, 4096")
    a("s_waitcnt vmcnt(16)\ns_branch L_kv")
    a("L_w1l:")
    srd(a,28,52,53,3584*2048)
    a(f"s_and_b32 s22, s2, 31\ns_lshr_b32 s23, s2, 5\ns_mul_i32 s46, s22, {32*7168}\ns_lshl_b32 s47, s23, 8\ns_add_u32 s46, s46, s47")
    a(f"v_mul_u32_u24 v114, {8*7168}, v113\nv_lshl_add_u32 v114, v112, 4, v114")
    for i in range(4):
        if i==3: a("s_cmp_ge_u32 s2, 128\ns_cselect_b32 s30, 0, s30")
        for t in range(8): a(f"s_add_u32 s47, s46, {t*7168+i*2048}\nbuffer_load_dwordx4 v[{RL+32*i+4*t}:{RL+3+32*i+4*t}], v114, s[28:31], s47 offen")
    a("s_waitcnt vmcnt(32)\ns_branch L_kv")
    a("L_w2l:")
    srd(a,28,56,57,3584*2048)
    a("s_lshr_b32 s46, s59, 2\ns_lshl_b32 s46, s46, 18\ns_and_b32 s47, s59, 3\ns_lshl_b32 s47, s47, 12\ns_add_u32 s46, s46, s47\ns_add_u32 s46, s46, s19")
    a("v_lshlrev_b32 v114, 16, v113\nv_lshl_add_u32 v114, v112, 3, v114")
    def w2l(i):
        for t in range(8):
            a(f"s_add_u32 s47, s46, {(8*(t&3)+(t>>2))*2048+i*(8<<18)}")
            for hf in range(2): a(f"buffer_load_dwordx2 v[{RL+32*i+16*hf+2*t}:{RL+1+32*i+16*hf+2*t}], v114, s[28:31], s47 offen offset:{128*hf}")
    w2l(0); w2l(1); a("s_waitcnt vmcnt(30)"); w2l(2); a("s_cmp_ge_u32 s2, 128\ns_cselect_b32 s30, 0, s30"); w2l(3)
    a("L_kv:"); stamp(a,1)
    KVL=65536
    a(f"v_mul_u32_u24 v8, 576, v124\nv_lshlrev_b32 v9, 4, v7\nv_sub_u32 v8, v8, v9\nv_add_u32 v8, {KVL+112}, v8")
    unpack(a,56,48,8)
    for c in range(4):
        for r in range(11):
            src=10+2*r+c//2
            a(f"v_lshlrev_b32 v{72+r}, 16, v{src}" if c%2==0 else f"v_and_b32 v{72+r}, 0xffff0000, v{src}")
        for r in range(8):
            src=32+2*r+c//2
            a(f"v_mul_f32 v{84+r}, v{56+4*c+3}, v{72+r}")
            a(f"v_lshlrev_b32 v{92}, 16, v{src}" if c%2==0 else f"v_and_b32 v{92}, 0xffff0000, v{src}")
            a(f"v_fmac_f32 v{84+r}, v{56+4*c+2}, v{73+r}\nv_fmac_f32 v{84+r}, v{56+4*c+1}, v{74+r}\nv_fmac_f32 v{84+r}, v{56+4*c}, v{75+r}")
            a(f"v_mul_f32 v{84+r}, v{84+r}, v92")
        for p in range(4): a(f"v_cvt_pk_bf16_f32 v{96+4*c+p}, v{84+7-2*p}, v{84+6-2*p}")
        a(f"ds_write_b128 v8, v[{96+4*c}:{99+4*c}] offset:{c*144}")
    a(f"s_mul_i32 s47, s20, {UR_STRIDE}\nv_mov_b32 v70, 0\nv_mov_b32 v71, 0\nv_lshlrev_b32 v7, 3, v2\nv_add_u32 v7, s47, v7\nds_write_b64 v7, v[70:71] offset:4096")
    a("s_waitcnt lgkmcnt(0)\ns_barrier")
    a(f"s_mul_i32 s64, s64, 0x9e3779b1\ns_add_u32 s64, s64, 0x7f4a7c15\ns_mov_b32 s65, {WS_FLG}")
    a("s_cmp_eq_u32 s20, 2\ns_cbranch_scc1 L_w1s\ns_cmp_eq_u32 s20, 3\ns_cbranch_scc1 L_w2s")
    a(f"v_lshrrev_b32 v8, 3, v0\nv_mul_u32_u24 v8, 144, v8\nv_and_b32 v9, 7, v0\nv_lshl_add_u32 v8, v9, 4, v8\nv_add_u32 v8, {KVL}, v8\nv_lshlrev_b32 v9, 4, v0")
    a(f"s_sub_u32 s18, 31, s59\ns_lshl_b32 s18, s18, 17\ns_lshl_b32 s19, s58, 14\ns_add_u32 s18, s18, s19\ns_add_u32 s18, s18, {WS_UR}")
    for it in range(8): a(f"ds_read_b128 v[{16+4*it}:{19+4*it}], v8 offset:{it*16*144}")
    for it in range(8):
        a(f"s_waitcnt lgkmcnt({7-it})\nbuffer_store_dwordx4 v[{16+4*it}:{19+4*it}], v9, s[32:35], s18 offen offset:{(it&1)*2048} sc1")
        if it&1: a("s_add_u32 s18, s18, 4096")
    a(f"s_mul_i32 s48, s20, {2*HP_STRIDE}\ns_add_u32 s48, s48, {HP0}\nv_add_u32 v9, s48, v3\ns_waitcnt vmcnt(8)")
    for i in range(7): a(f"v_mov_b32 v{116+i}, 0")
    for cc in range(2):
        for it in range(4):
            b=RL+16*cc+4*it; o=56+4*it
            a(f"ds_write_b128 v9, v[{b}:{b+3}] offset:{cc*HP_STRIDE+32+it*1024}")
            a(f"v_alignbit_b32 v{o}, v{b+1}, v{b}, 16\nv_alignbit_b32 v{o+1}, v{b+2}, v{b+1}, 16\nv_alignbit_b32 v{o+2}, v{b+3}, v{b+2}, 16\nv_alignbit_b32 v{o+3}, v{RL+32+4*cc+it}, v{b+3}, 16")
            a(f"ds_write_b128 v9, v[{o}:{o+3}] offset:{cc*HP_STRIDE+HP_C1+32+it*1024}")
        h=cc*HP_STRIDE
        a(f"v_lshlrev_b32 v123, 16, v{RL+16*cc}\ns_mov_b64 exec, 1\nds_write_b128 v9, v[116:119] offset:{h}\nds_write_b128 v9, v[116:119] offset:{h+16}\nds_write_b128 v9, v[116:119] offset:{h+HP_C1}\nds_write_b128 v9, v[120:123] offset:{h+HP_C1+16}\ns_mov_b64 exec, -1\ns_waitcnt lgkmcnt(0)")
    signal(a,0,"s58","s59")
    wait(a,0,"s58",32)
    a(f"s_lshl_b32 s18, s20, 1\ns_add_u32 s19, s18, s21\ns_lshl_b32 s19, s19, 7\ns_add_u32 s19, s19, {WS_UR}\ns_mul_i32 s18, s18, {UR_STRIDE}")
    a("v_lshrrev_b32 v4, 3, v2\nv_lshlrev_b32 v4, 17, v4\nv_and_b32 v5, 7, v2\nv_lshl_add_u32 v4, v5, 4, v4")
    for it in range(4):
        for cc in range(2):
            a(f"s_add_u32 m0, s18, {cc*UR_STRIDE+it*1024}\ns_add_u32 s22, s19, {cc*128+it*(8<<17)}\nbuffer_load_dwordx4 v4, s[32:35], s22 offen sc1 lds")
    a("s_waitcnt vmcnt(0)\ns_branch L_cv")
    a("L_w1s:\ns_barrier")
    a(f"s_mul_i32 s46, s22, {14*1024}\ns_add_u32 s46, s46, {WS_W1F}\ns_lshl_b32 s23, s23, 3")
    for i in range(4):
        if i==3: a("s_cmp_ge_u32 s2, 128\ns_cbranch_scc1 L_w1e")
        a(f"s_waitcnt vmcnt(24)")
        for x in range(8):
            o=16+4*x+32*(i&1); b=RL+32*i
            a(f"s_add_u32 s47, s23, {x+64*i}\ns_mul_i32 s49, s47, 4682\ns_lshr_b32 s49, s49, 16\ns_mul_i32 s49, s49, {32*14-14}\ns_add_u32 s47, s47, s49\ns_lshl_b32 s47, s47, 10\ns_add_u32 s47, s47, s46")
            for p in range(4): a(f"v_perm_b32 v{o+p}, v{b+4*(2*p+1)+x//2}, v{b+4*(2*p)+x//2}, s{68+(x&1)}")
            a(f"buffer_store_dwordx4 v[{o}:{o+3}], v3, s[32:35], s47 offen sc1")
    a("L_w1e:\ns_cmp_ge_u32 s2, 28\ns_cbranch_scc1 L_wj")
    srd(a,28,54,55,7168)
    a(f"v_lshlrev_b32 v8, 2, v2\ns_lshl_b32 s47, s2, 8\nbuffer_load_dword v9, v8, s[28:31], s47 offen\nv_and_b32 v10, 3, v2\nv_lshlrev_b32 v10, 7, v10\nv_and_b32 v11, 60, v2\nv_add_u32 v10, v10, v11\ns_lshl_b32 s47, s2, 9\ns_add_u32 s47, s47, {WS_B1F}")
    a("s_waitcnt vmcnt(0)\nv_lshlrev_b32 v11, 16, v9\nv_and_b32 v12, 0xffff0000, v9\nbuffer_store_dword v11, v10, s[32:35], s47 offen sc1\nbuffer_store_dword v12, v10, s[32:35], s47 offen offset:64 sc1\ns_branch L_wj")
    a("L_w2s:\ns_barrier")
    a(f"s_mul_i32 s46, s58, {2*112*4096}\ns_lshl_b32 s47, s59, 12\ns_add_u32 s46, s46, s47\ns_add_u32 s46, s46, {WS_W2F}")
    for i in range(4):
        if i==3: a("s_cmp_ge_u32 s2, 128\ns_cbranch_scc1 L_wj")
        a(f"s_waitcnt vmcnt({48-8*i})")
        for hf in range(2):
            a(f"s_add_u32 s47, s46, {i*32*4096+hf*112*4096}")
            for x in range(4):
                o=16+16*hf+4*x+32*(i&1); b=RL+32*i+16*hf
                for p in range(4): a(f"v_perm_b32 v{o+p}, v{b+2*(2*p+1)+x//2}, v{b+2*(2*p)+x//2}, s{68+(x&1)}")
                a(f"buffer_store_dwordx4 v[{o}:{o+3}], v3, s[32:35], s47 offen offset:{x*1024} sc1")
    a("L_wj:\ns_waitcnt vmcnt(24)\ns_barrier")
    a("L_cv:"); lnq(a)
    a(f"s_mul_i32 s47, s20, {UR_STRIDE}\ns_mul_i32 s48, s20, {HP_STRIDE}\ns_add_u32 s48, s48, {HP0}")
    a("s_lshr_b32 s49, s20, 1\ns_cmp_eq_u32 s49, 0\ns_cselect_b32 s49, s44, s45\ns_lshl_b32 s50, s49, 16\ns_and_b32 s49, s49, 0xffff0000\ns_bitcmp1_b32 s20, 0\ns_cselect_b32 s49, s49, s50")
    a("v_add_u32 v5, 1, v112\nv_lshrrev_b32 v5, 1, v5\nv_lshl_add_u32 v5, v113, 2, v5\nv_lshlrev_b32 v5, 2, v5")
    a(f"v_and_b32 v6, 1, v112\nv_xor_b32 v6, 1, v6\nv_mul_u32_u24 v6, {HP_C1}, v6\nv_add3_u32 v5, v5, v6, s48")
    for q in range(1,4): a(f"v_add_u32 v{5+q}, {1024*q}, v5")
    a(f"v_lshlrev_b32 v9, 5, v112\nv_sub_u32 v9, {2*2032-512*7}, v9\nv_lshl_add_u32 v9, v113, 4, v9\nv_add_u32 v9, s47, v9")
    for i in range(32): a(f"v_accvgpr_write_b32 a{i}, 0")
    a("s_barrier"); stamp(a,3)
    FA=[128,192]; FB=[160,224]
    def rd(rho,buf):
        L=[]
        for x in range(8):
            L.append(f"ds_read_b128 v[{FB[buf]+4*x}:{FB[buf]+4*x+3}], v9 offset:{512*(7-x)+64*rho}")
            o=(x%2)*128+16*rho
            L.append(f"ds_read2_b32 v[{FA[buf]+4*x}:{FA[buf]+4*x+1}], v{5+x//2} offset0:{o} offset1:{o+1}")
            L.append(f"ds_read2_b32 v[{FA[buf]+4*x+2}:{FA[buf]+4*x+3}], v{5+x//2} offset0:{o+2} offset1:{o+3}")
        return L
    for s in rd(0,0): a(s)
    a("s_mov_b32 s51, 4\nL_cvl:")
    for rho in range(2):
        buf=rho&1; a("s_waitcnt lgkmcnt(0)"); nxt=rd(rho+1,buf^1); n=0
        for aa in range(8):
            for b in range(8-aa):
                J=aa+b
                a(f"{MF} a[{4*J}:{4*J+3}], v[{FA[buf]+4*aa}:{FA[buf]+4*aa+3}], v[{FB[buf]+4*b}:{FB[buf]+4*b+3}], a[{4*J}:{4*J+3}]")
                if n<len(nxt): a(nxt[n]); n+=1
                elif rho==1 and n<len(nxt)+5: a(f"v_add_u32 v{5+n-len(nxt)}, 128, v{5+n-len(nxt)}"); n+=1
    a("s_sub_u32 s51, s51, 1\ns_cmp_lg_u32 s51, 0\ns_cbranch_scc1 L_cvl\ns_waitcnt lgkmcnt(0)")
    a(f"v_lshlrev_b32 v4, 5, v112\nv_lshl_add_u32 v4, v113, 3, v4\nv_add_u32 v5, s48, v4\nv_sub_u32 v4, {2*2044-512*7}, v4\nv_add_u32 v4, s47, v4")
    for J in range(8): a(f"ds_read_b64 v[{128+2*J}:{129+2*J}], v4 offset:{512*(7-J)}")
    for J in range(8):
        k0=128+2*J
        for r in range(4): a(f"v_accvgpr_read_b32 v{148+r}, a{4*J+r}")
        a(f"s_waitcnt lgkmcnt(7)\nv_and_b32 v144, 0xffff0000, v{k0+1}\nv_lshlrev_b32 v145, 16, v{k0+1}\nv_and_b32 v146, 0xffff0000, v{k0}\nv_lshlrev_b32 v147, 16, v{k0}")
        for r in range(4): a(f"v_fmac_f32 v{148+r}, s49, v{144+r}")
        a(f"v_cvt_pk_bf16_f32 v{152+2*J}, v148, v149\nv_cvt_pk_bf16_f32 v{153+2*J}, v150, v151\nds_write_b64 v5, v[{152+2*J}:{153+2*J}] offset:{512*J}")
    a(f"v_lshlrev_b32 v6, 2, v0\nv_add_u32 v6, {HP0}, v6\ns_waitcnt lgkmcnt(0)\ns_barrier")
    for it in range(4):
        for c in range(4): a(f"ds_read_b32 v{168+4*it+c}, v6 offset:{c*HP_STRIDE+it*1024}")
    a("v_lshrrev_b32 v7, 2, v0\nv_lshlrev_b32 v7, 14, v7\nv_and_b32 v8, 3, v0\nv_lshl_add_u32 v7, v8, 4, v7\ns_lshl_b32 s50, s21, 4")
    for it in range(4):
        b=168+4*it; o=184+4*it
        a(f"s_waitcnt lgkmcnt({12-4*it})\nv_perm_b32 v{o}, v{b+1}, v{b}, s68\nv_perm_b32 v{o+1}, v{b+3}, v{b+2}, s68\nv_perm_b32 v{o+2}, v{b+1}, v{b}, s69\nv_perm_b32 v{o+3}, v{b+3}, v{b+2}, s69")
        a(f"buffer_store_dwordx4 v[{o}:{o+3}], v7, s[32:35], s50 offen sc1\ns_add_u32 s50, s50, {64*16384}")

X=32
def stats(a, off):
    a(f"v_add_f32 v28, v{X}, v{X+1}\nv_mul_f32 v29, v{X}, v{X}\nv_mul_f32 v30, v{X+1}, v{X+1}")
    for e in range(2,32,2):
        a(f"v_add_f32 v31, v{X+e}, v{X+e+1}\nv_fmac_f32 v29, v{X+e}, v{X+e}\nv_fmac_f32 v30, v{X+e+1}, v{X+e+1}\nv_add_f32 v28, v28, v31")
    a("v_add_f32 v29, v29, v30\ns_nop 1\nv_permlane32_swap_b32 v28, v29\ns_nop 1\nv_add_f32 v28, v28, v29\nv_mov_b32 v29, v28\ns_nop 1\nv_permlane16_swap_b32 v28, v29\ns_nop 1\nv_add_f32 v28, v28, v29\ns_nop 1")
    a("v_add_f32_dpp v28, v28, v28 row_ror:8 row_mask:0xf bank_mask:0xf")
    a(f"ds_write_b32 v25, v28 offset:{off}\ns_waitcnt lgkmcnt(0)\ns_barrier\nds_read_b128 v[132:135], v24 offset:{off}\nds_read_b128 v[136:139], v24 offset:{off+16}")
    a("s_mov_b32 s54, 0x3a800000\ns_mov_b32 s55, 0x3727c5ac\ns_waitcnt lgkmcnt(0)")
    a("v_add_f32 v132, v132, v133\nv_add_f32 v134, v134, v135\nv_add_f32 v136, v136, v137\nv_add_f32 v138, v138, v139\nv_add_f32 v132, v132, v134\nv_add_f32 v136, v136, v138")
    a("v_mul_f32 v132, s54, v132\nv_mul_f32 v136, s54, v136\nv_fma_f32 v136, -v132, v132, v136\nv_max_f32 v136, 0, v136\nv_add_f32 v136, s55, v136\nv_rsq_f32 v136, v136\ns_nop 0\nv_mul_f32 v132, v132, v136")
def g1_pre(a):
    g1_setup(a)
    for st in range(3):
        a(f"s_mov_b32 s44, {st*ST}")
        for s in g1_issue_w(): a(s)
    a("s_mov_b32 s44, 0\ns_and_b32 s21, s20, 1\ns_lshr_b32 s22, s20, 1")
    a(f"v_lshrrev_b32 v4, 4, v2\nv_lshlrev_b32 v4, 4, v4\ns_mul_i32 s23, s17, 896\ns_mul_i32 s24, s22, 448\ns_add_u32 s23, s23, s24\ns_add_u32 s23, s23, {WS_B1F}")
    for i in range(7): a(f"buffer_load_dwordx4 v[{104+4*i}:{107+4*i}], v4, s[32:35], s23 offen offset:{64*i}")
def main():
    a=Asm()
    a("s_cmp_ge_u32 s2, 256\ns_cbranch_scc1 L_end\ns_mov_b32 s76, 0"); stamp(a)
    tilemap(a,4,8)
    a(f"s_mov_b32 s60, 0\ns_mov_b32 s61, {WS_XN[0]}\ns_mov_b32 s62, {WS_X1}\ns_mov_b32 s63, {WS_H[0]}")
    front(a); stamp(a)
    signal(a,1,"s16","s17"); stamp(a)
    unpack(a,X,64,16); stats(a,0)
    wait(a,1,None,256); stamp(a)
    for i in range(4):
        for hh in range(2): a(f"buffer_load_dwordx2 v[{80+4*i+2*hh}:{81+4*i+2*hh}], v15, s[32:35], s52 offen offset:{i*1024+hh*64} sc1")
    g1_pre(a)
    a("s_waitcnt vmcnt(28)")
    for p in range(16): a(f"v_accvgpr_write_b32 a{128+p}, v{80+p}")
    a("L_lnc:"); stamp(a)
    for p in range(16):
        a(f"v_lshlrev_b32 v28, 16, v{80+p}\nv_and_b32 v29, 0xffff0000, v{80+p}\nv_fma_f32 v30, v{X+2*p}, v136, -v132\nv_fma_f32 v31, v{X+2*p+1}, v136, -v132\nv_fmac_f32 v{X+2*p}, v30, v28\nv_fmac_f32 v{X+2*p+1}, v31, v29\nv_cvt_pk_bf16_f32 v{64+p}, v{X+2*p}, v{X+2*p+1}")
    a("s_add_u32 s52, s52, s62")
    unpack(a,X,64,16)
    for i in range(4): a(f"buffer_store_dwordx4 v[{64+4*i}:{67+4*i}], v14, s[32:35], s52 offen offset:{128*i} sc1")
    stats(a,256)
    for i in range(4):
        for e in range(8*i,8*i+8): a(f"v_fma_f32 v{X+e}, v{X+e}, v136, -v132")
        for p in range(4*i,4*i+4): a(f"v_cvt_pk_bf16_f32 v{80+p}, v{X+2*p}, v{X+2*p+1}")
        a(f"buffer_store_dwordx4 v[{80+4*i}:{83+4*i}], v26, s[32:35], s53 offen sc1\ns_add_u32 s53, s53, 16384")
    a("s_waitcnt vmcnt(8)")
    for i in range(7):
        for j in range(4):
            for r in range(4): a(f"v_accvgpr_write_b32 a{4*(4*i+j)+r}, v{104+4*i+r}")
    stamp(a); signal(a,2,"s16","s17"); stamp(a)
    wait(a,2,"s16",16); stamp(a)
    g1_body(a,"g1",mega=True)
    for i in range(128): a(f"v_accvgpr_write_b32 a{i}, 0")
    stamp(a); signal(a,3,"s16","s17"); stamp(a)
    g2_body(a,"g2",mega=lambda: (wait(a,3,"s16",16), stamp(a)))
    stamp(a)
    a("s_cmp_lg_u32 s60, 0\ns_cbranch_scc1 L_fin")
    signal(a,4,"s16","s17"); stamp(a)
    a(f"s_mov_b32 s60, 1\ns_mov_b32 s61, {WS_XN[1]}\ns_mov_b32 s62, {WS_X3}\ns_mov_b32 s63, {WS_H[1]}")
    g1_pre(a); ln_addr(a)
    for p in range(16): a(f"v_accvgpr_read_b32 v{80+p}, a{128+p}")
    a(f"s_or_b32 s54, s2, s20\ns_cmp_lg_u32 s54, 0\ns_cbranch_scc1 L_nn\nv_mov_b32 v12, s64\nv_mov_b32 v13, 0\ns_mov_b32 s54, {WS_NONCE}\ns_mov_b64 exec, 1\nbuffer_store_dword v12, v13, s[32:35], s54 offen sc1\ns_mov_b64 exec, -1\nL_nn:")
    wait(a,4,"s16",16); stamp(a)
    a(f"s_add_u32 s54, s52, {WS_X2}\ns_add_u32 s65, s65, {3*0x4000}")
    for i in range(4): a(f"buffer_load_dwordx4 v[{64+4*i}:{67+4*i}], v14, s[32:35], s54 offen offset:{128*i} sc1")
    a("s_waitcnt vmcnt(0)")
    unpack(a,X,64,16); stats(a,0)
    a("s_branch L_lnc\nL_fin:")
    if STAMP:
        a("s_waitcnt vmcnt(0)"); stamp(a)
        a(f"v_lshlrev_b32 v2, 2, v0\ns_lshl_b32 s74, s2, 10\ns_add_u32 s74, s74, {WS_DBG}\nv_writelane_b32 v1, s76, 63\nbuffer_store_dword v1, v2, s[32:35], s74 offen")
    a("L_end:\ns_endpgm")
    N="interleave_layers__ssm_conv_h3__dense_activation_squared_relu__prompt"
    hdr="".join(l for l in open(f"cdna_kernels/{N}.s.ref").readlines()[:15])
    out=sys.argv[1] if len(sys.argv)>1 else f"cdna_kernels/{N}.s"
    t=assemble_file([(N+"_kernel",256,256,LN_LDS+1024)],[(N+"_kernel",a.text(),kernel_desc(N+"_kernel",512,256))])
    if not os.environ.get("LIST"): t=t.replace(f"kernel={N}_kernel ","")
    open(out,"w").write(hdr+t)
main()
```

```python
from common import *
from k_conv import *
MF="v_mfma_f32_16x16x32_bf16"
G1MAP=eval(os.environ.get("G1MAP","(8,4)"))
LSC=os.environ.get("LSC","").replace("_"," ")
def tilemap(a, mtx, ntx):
    import math
    lg=lambda x:int(math.log2(x)); nxn=16//ntx
    a(f"s_and_b32 s18, s2, 7\ns_lshr_b32 s19, s2, 3\ns_lshr_b32 s16, s18, {lg(nxn)}\ns_lshl_b32 s16, s16, {lg(mtx)}\ns_lshr_b32 s17, s19, {lg(ntx)}\ns_add_u32 s16, s16, s17")
    a(f"s_and_b32 s17, s18, {nxn-1}\ns_lshl_b32 s17, s17, {lg(ntx)}\ns_and_b32 s19, s19, {ntx-1}\ns_add_u32 s17, s17, s19")
ST=45056
def g1_setup(a):
    a("s_lshl_b32 s40, s20, 12\ns_mul_i32 s41, s20, 7168")
    a(f"s_lshl_b32 s42, s16, 18\ns_add_u32 s42, s42, s40\ns_add_u32 s42, s42, s61")
    a(f"s_mul_i32 s43, s17, 458752\ns_add_u32 s43, s43, s41\ns_add_u32 s43, s43, {WS_W1F}\ns_add_u32 s41, s41, 16384\ns_mov_b32 s44, 0")
def g1_issue_w():
    L=[f"s_add_u32 m0, s41, s44\ns_add_u32 s45, s43, 4096\nbuffer_load_dwordx4 v3, s[32:35], s43 offen lds"]
    for i in range(1,4): L.append(f"buffer_load_dwordx4 v3, s[32:35], s43 offen offset:{i*1024} lds")
    L.append(f"s_add_u32 m0, m0, 4096\ns_add_u32 s43, s43, 28672\nbuffer_load_dwordx4 v3, s[32:35], s45 offen lds")
    for i in range(1,3): L.append(f"buffer_load_dwordx4 v3, s[32:35], s45 offen offset:{i*1024} lds")
    return L
def g1_issue_x():
    L=[f"s_add_u32 m0, s40, s44\ns_add_u32 s44, s44, {ST}\nbuffer_load_dwordx4 v3, s[32:35], s42 offen lds{LSC}"]
    for i in range(1,4): L.append(f"buffer_load_dwordx4 v3, s[32:35], s42 offen offset:{i*1024} lds{LSC}")
    L[-1]+=f"\ns_add_u32 s42, s42, 16384\ns_cmp_eq_u32 s44, {3*ST}\ns_cselect_b32 s44, 0, s44"
    return L
def w2rel_loads(a, R, name):
    a("s_load_dwordx2 s[4:5], s[0:1], 72\ns_lshl_b32 s46, s2, 2\ns_add_u32 s46, s46, s20\ns_waitcnt lgkmcnt(0)")
    srd(a,28,4,5,3584*2048)
    a("s_and_b32 s47, s46, 7\ns_lshr_b32 s48, s46, 3\ns_lshr_b32 s49, s48, 2\ns_lshl_b32 s49, s49, 18\ns_and_b32 s50, s48, 3\ns_lshl_b32 s50, s50, 12\ns_add_u32 s49, s49, s50\ns_lshl_b32 s50, s47, 8\ns_add_u32 s49, s49, s50")
    a("v_lshrrev_b32 v10, 4, v2\nv_lshlrev_b32 v10, 16, v10\nv_and_b32 v11, 15, v2\nv_lshl_add_u32 v10, v11, 3, v10")
    for hf in range(2):
        for t in range(8):
            a(f"s_add_u32 s50, s49, {(8*(t&3)+(t>>2))*2048}\nbuffer_load_dwordx2 v[{R+16*hf+2*t}:{R+1+16*hf+2*t}], v10, s[28:31], s50 offen offset:{128*hf}")
    a(f"s_mul_i32 s49, s47, {2*112*4096}\ns_lshl_b32 s50, s48, 12\ns_add_u32 s49, s49, s50\ns_add_u32 s49, s49, {WS_W2F}")
    a("s_mov_b32 s47, 0x05040100\ns_mov_b32 s48, 0x07060302")
def w2rel_stores(a, R, O):
    for hf in range(2):
        for x in range(4):
            o=O+16*hf+4*x
            for p in range(4): a(f"v_perm_b32 v{o+p}, v{R+16*hf+2*(2*p+1)+x//2}, v{R+16*hf+2*(2*p)+x//2}, s{47+(x&1)}")
            a(f"buffer_store_dwordx4 v[{o}:{o+3}], v3, s[32:35], s49 offen offset:{x*1024}{SC}")
        a(f"s_add_u32 s49, s49, {112*4096}")
def g1_body(a, name, mega=False):
    P=16; Q=60; BI=104; R=132; O=164
    if mega:
        for s in g1_issue_x()+g1_issue_x()+g1_issue_x(): a(s)
    else:
      a("s_and_b32 s21, s20, 1\ns_lshr_b32 s22, s20, 1")
      a(f"v_lshrrev_b32 v4, 4, v2\nv_lshlrev_b32 v4, 4, v4\ns_mul_i32 s23, s17, 896\ns_mul_i32 s24, s22, 448\ns_add_u32 s23, s23, s24\ns_add_u32 s23, s23, {WS_B1F}")
      for i in range(7): a(f"buffer_load_dwordx4 v[{BI+4*i}:{BI+4*i+3}], v4, s[32:35], s23 offen offset:{64*i}")
      for s in g1_issue_w()+g1_issue_x()+g1_issue_w()+g1_issue_x(): a(s)
    a("s_lshl_b32 s24, s21, 12\ns_mul_i32 s25, s22, 7168\ns_add_u32 s25, s25, 16384")
    a("v_add_u32 v5, s24, v3\nv_add_u32 v8, s25, v3\nv_mov_b32 v6, v5\nv_mov_b32 v9, v8\ns_mov_b32 s36, 0")
    a(f"s_mul_i32 s26, s16, 917504\ns_mul_i32 s27, s17, {7*8192}\ns_add_u32 s26, s26, s27\ns_lshl_b32 s27, s21, 12\ns_add_u32 s26, s26, s27\ns_add_u32 s26, s26, s63")
    def reads(kbl,R):
        w=[f"ds_read_b128 v[{R+16+4*i}:{R+19+4*i}], v9 offset:{kbl*14336+i*1024}" for i in range(7)]
        x=[f"ds_read_b128 v[{R+4*j}:{R+4*j+3}], v6 offset:{kbl*8192+j*1024}" for j in range(4)]
        return [w[0]]+x+w[1:]
    def mfmas(R, extra):
        c=0
        for i in range(7):
            for j in range(4):
                d=132+4*(4*i+j)
                a(f"{MF} v[{d}:{d+3}], v[{R+16+4*i}:{R+19+4*i}], v[{R+4*j}:{R+4*j+3}], v[{d}:{d+3}]")
                if c in extra: a(extra[c])
                c+=1
    if not mega: a("s_waitcnt vmcnt(22)")
    for i in range(0 if mega else 7):
        for j in range(4):
            for r in range(4): a(f"v_accvgpr_write_b32 a{4*(4*i+j)+r}, v{BI+4*i+r}")
    a(f"s_waitcnt vmcnt({4 if mega else 11})\ns_barrier"); stamp(a,1)
    for s in reads(0,P): a(s)
    for s in ([] if mega else g1_issue_w()+g1_issue_x()): a(s)
    nxt=[f"s_add_u32 s36, s36, {ST}\ns_cmp_eq_u32 s36, {3*ST}\ns_cselect_b32 s36, 0, s36","v_add_u32 v6, s36, v5","v_add_u32 v9, s36, v8"]
    def step(vm, dma, last=False, loop=None):
        a("s_waitcnt lgkmcnt(0)")
        ex=dict(enumerate(reads(1,Q)+([] if last else nxt)))
        d=g1_issue_w()+g1_issue_x() if dma else []
        if not last: ex[17]=f"s_waitcnt vmcnt({vm}) lgkmcnt(0)\ns_barrier"
        for k in range(min(4,len(d))): ex[19+2*k]=d[k]
        mfmas(P, ex)
        if last: a("s_waitcnt lgkmcnt(0)")
        ex=dict(enumerate([] if last else reads(0,P)))
        for k in range(4,len(d)): ex[12+2*(k-4)]=d[k]
        if loop: ex[26]="s_sub_u32 s37, s37, 1\ns_cmp_lg_u32 s37, 0"
        mfmas(Q, ex)
        if loop: a(f"s_cbranch_scc1 {loop}")
    a(f"s_mov_b32 s37, 13\nL_cl_{name}:"); step(11,True,loop=f"L_cl_{name}")
    step(11,False); step(0,False); step(0,False,last=True)
    a("s_nop 7"); stamp(a,3)
    def act(d, T, U):
        U=132+d
        for r in range(4): a(f"v_max_f32 v{U+r}, 0, v{U+r}")
        a(f"v_pk_mul_f32 v[{U}:{U+1}], v[{U}:{U+1}], v[{U}:{U+1}]\nv_pk_mul_f32 v[{U+2}:{U+3}], v[{U+2}:{U+3}], v[{U+2}:{U+3}]")
        a(f"v_cvt_pk_bf16_f32 v{T}, v{U}, v{U+1}\nv_cvt_pk_bf16_f32 v{T+1}, v{U+2}, v{U+3}")
    a(f"s_cmp_eq_u32 s22, 1\ns_cbranch_scc1 L_ep1_{name}")
    for wn in range(2):
        if wn==1: a(f"s_branch L_epd_{name}\nL_ep1_{name}:")
        T=P
        groups=[(0,[0,1]),(1,[2,3]),(2,[4,5]),(3,[6])] if wn==0 else [(3,[0]),(4,[1,2]),(5,[3,4]),(6,[5,6])]
        for u,ii in groups:
            a(f"s_add_u32 s27, s26, {u*8192}")
            for j in range(4):
                for q,i in enumerate(ii): act(4*(4*i+j), T+2*q, BI+4*q)
                if len(ii)==2: a(f"buffer_store_dwordx4 v[{T}:{T+3}], v3, s[32:35], s27 offen offset:{j*1024}{SC}")
                else: a(f"buffer_store_dwordx2 v[{T}:{T+1}], v3, s[32:35], s27 offen offset:{j*1024+8*wn}{SC}")
                T+=4
    a(f"L_epd_{name}:")
def gen_g1(name):
    a=Asm(); a(f"B_{name}:")
    a(f"s_cmp_ge_u32 s2, 256\ns_cbranch_scc1 L_end_{name}")
    stamp(a,0)
    a("s_load_dwordx2 s[14:15], s[0:1], 104")
    a("v_lshrrev_b32 v1, 6, v0\nv_and_b32 v2, 63, v0\nv_lshlrev_b32 v3, 4, v2\nv_readfirstlane_b32 s20, v1")
    tilemap(a,*G1MAP)
    g1_setup(a)
    a("s_waitcnt lgkmcnt(0)")
    srd(a,32,14,15,WS_SIZE)
    g1_body(a,name)
    stamp(a,4); stamp_out(a,name,5)
    a(f"L_end_{name}:\ns_endpgm")
    return a.text(), (196+112,196,256,256,3*ST)

WS_XCH=0x6000000
def g2_body(a, name, mega):
    a("s_load_dwordx4 s[4:7], s[0:1], 80\ns_load_dwordx2 s[14:15], s[0:1], 104")
    a("s_lshr_b32 s46, s17, 3\ns_and_b32 s47, s20, 1\ns_and_b32 s48, s17, 7\ns_lshl_b32 s48, s48, 1\ns_lshr_b32 s23, s20, 1\ns_add_u32 s48, s48, s23\ns_mul_i32 s49, s46, 56\ns_lshl_b32 s44, s20, 12")
    a(f"s_mul_i32 s21, s16, 917504\ns_lshl_b32 s22, s49, 13\ns_add_u32 s21, s21, s22\ns_add_u32 s21, s21, s63\ns_add_u32 s21, s21, s44")
    a(f"s_mul_i32 s22, s48, 458752\ns_lshl_b32 s49, s49, 1\ns_add_u32 s49, s49, s47\ns_lshl_b32 s49, s49, 11\ns_add_u32 s22, s22, s49\ns_add_u32 s22, s22, {WS_W2F}")
    a("s_waitcnt lgkmcnt(0)")
    srd(a,28,4,5,2048)
    a(f"s_add_u32 s8, s14, {WS_X2}\ns_addc_u32 s9, s15, 0\ns_cmp_eq_u32 s60, 0\ns_cselect_b32 s6, s8, s6\ns_cselect_b32 s7, s9, s7")
    srd(a,24,6,7,1<<22)
    a("v_and_b32 v5, 15, v2\nv_lshlrev_b32 v5, 11, v5\nv_lshrrev_b32 v6, 4, v2\nv_lshlrev_b32 v6, 4, v6\nv_add_u32 v5, v5, v6\nv_add_u32 v4, 4096, v3\nv_add_u32 v7, 8192, v3")
    a("s_lshl_b32 s36, s16, 18\ns_lshl_b32 s37, s46, 17\ns_add_u32 s36, s36, s37\ns_lshl_b32 s37, s48, 1\ns_add_u32 s37, s37, s47\ns_lshl_b32 s37, s37, 6\ns_add_u32 s36, s36, s37\ns_add_u32 s38, s36, s62")
    a(f"s_lshl_b32 s50, s16, 4\ns_add_u32 s50, s50, s17\ns_lshl_b32 s50, s50, 2\ns_add_u32 s50, s50, s20\ns_lshl_b32 s50, s50, 13\ns_lshl_b32 s49, s60, 23\ns_add_u32 s50, s50, s49\ns_add_u32 s50, s50, {WS_XCH}\ns_xor_b32 s51, s50, {32<<13}")
    P=36; Q=68; W=104; NS=int(os.environ.get("NS","3"))
    def wld(s):
        R=W+16*(s%8); L=[f"buffer_load_dwordx4 v[{R+4*i}:{R+4*i+3}], v{3+i//2}, s[32:35], s22 offen offset:{(i&1)*1024}" for i in range(4)]
        L[-1]+="\ns_add_u32 s22, s22, 8192"; return L
    def hld(s):
        L=[f"buffer_load_dwordx4 v3, s[32:35], s21 offen offset:{i*1024} lds" for i in range(4)]
        L[0]=f"s_add_u32 m0, s44, {(s%8)*16384}\ns_nop 0\n"+L[0]; L[-1]+="\ns_add_u32 s21, s21, 16384"; return L
    def reads(s,kbl,R):
        L=[f"ds_read_b128 v[{R+4*j}:{R+4*j+3}], v{102+(s%8)//4} offset:{(s%4)*16384+kbl*8192+j*1024}" for j in range(8)]
        return [L[2*i]+"\n"+L[2*i+1] for i in range(4)]
    BP=int(os.environ.get("BP","13"))
    def mfmas(R, Wr, ex):
        for c in range(16):
            a(f"{MF} a[{4*c}:{4*c+3}], v[{Wr+4*(c&1)}:{Wr+4*(c&1)+3}], v[{R+4*(c//2)}:{R+4*(c//2)+3}], a[{4*c}:{4*c+3}]")
            if c in ex: a(ex[c])
    def step(s, vm, d, last=False, loop=None):
        a("s_waitcnt lgkmcnt(0)")
        ex=dict(enumerate(reads(s,1,Q))); d=list(d)
        for c in range(5,BP,2):
            if len(d)>4: ex[c]=d.pop(0)
        if not last: ex[BP]=f"s_waitcnt vmcnt({vm})\ns_barrier"
        mfmas(P, W+16*(s%8), ex)
        a("s_waitcnt lgkmcnt(0)")
        ex=dict(enumerate([] if last else reads(s+1,0,P)))
        for c in range(5,15,2):
            if d: ex[c]=d.pop(0)
        if loop: ex[15]="s_sub_u32 s39, s39, 1\ns_cmp_lg_u32 s39, 0"
        mfmas(Q, W+16*(s%8)+8, ex)
        if loop: a(f"s_cbranch_scc1 {loop}")
    a("v_mov_b32 v102, v3\nv_add_u32 v103, 0x10000, v3")
    mega()
    for s in range(NS):
        for x in wld(s)+hld(s): a(x)
    a(f"s_waitcnt vmcnt({8*NS-8})\ns_barrier")
    for x in reads(0,0,P): a(x)
    NL=(28-NS)//8
    a(f"s_mov_b32 s39, {NL}\nL_cl_{name}:")
    for s in range(8): step(s,8*NS-12,wld(s+NS)+hld(s+NS),loop=f"L_cl_{name}" if s==7 else None)
    ex=[f"s_add_u32 s49, s38, {jj*32768}\nbuffer_load_dwordx4 v[{16+4*jj}:{19+4*jj}], v5, s[32:35], s49 offen sc1" for jj in range(4)]
    ex[0]+="\nbuffer_load_dwordx4 v[8:11], v6, s[28:31], s37 offen"
    for s in range(8*NL,28):
        if s+NS<28: step(s,8*NS-12,wld(s+NS)+hld(s+NS))
        else: step(s,max(0,8*(26-s))+(5 if s+NS>28 else 0),ex if s+NS==28 else [],last=s==27)
    OWN=36; EX=104; RD=152
    for t in range(6): a(f"v_mov_b32 v{EX+4*t+3}, s64")
    a("s_nop 4")
    a("s_nop 7"); stamp(a,3)
    a(f"s_cmp_eq_u32 s46, 1\ns_cbranch_scc1 L_k1_{name}")
    for k in range(2):
        if k==1: a(f"s_branch L_kd_{name}\nL_k1_{name}:")
        for t in range(6):
            for u in range(6 if t<5 else 2): a(f"v_accvgpr_read_b32 v{128+u}, a{32*(1-k)+6*t+u}")
            for u in range(3 if t<5 else 1): a(f"v_cvt_pk_bf16_f32 v{EX+4*t+u}, v{128+2*u}, v{129+2*u}")
            a(f"buffer_store_dwordx4 v[{EX+4*t}:{EX+4*t+3}], v{[3,4,7][t//4]}, s[32:35], s50 offen offset:{(t%4)*1024} sc1")
        for t in range(32): a(f"v_accvgpr_read_b32 v{OWN+t}, a{32*k+t}")
    a(f"L_kd_{name}:\ns_waitcnt vmcnt(6)\ns_mov_b32 s39, 0x40000")
    for r in range(4):
        a(f"v_lshlrev_b32 v33, 16, v{8+r}\nv_and_b32 v34, 0xffff0000, v{8+r}")
        for jj in range(4): a(f"v_add_f32 v{OWN+8*jj+r}, v{OWN+8*jj+r}, v33\nv_add_f32 v{OWN+8*jj+4+r}, v{OWN+8*jj+4+r}, v34")
    a(("" if os.environ.get("ND") else "s_waitcnt vmcnt(0)\n")+f"L_px_{name}:")
    for t in range(6): a(f"buffer_load_dwordx4 v[{RD+4*t}:{RD+4*t+3}], v{[3,4,7][t//4]}, s[32:35], s51 offen offset:{(t%4)*1024} sc1")
    a(f"s_waitcnt vmcnt(0)\nv_mov_b32 v33, 0")
    for t in range(0,6,2): a(f"v_xor_b32 v34, s64, v{RD+4*t+3}\nv_xor_b32 v35, s64, v{RD+4*t+7}\nv_or3_b32 v33, v33, v34, v35")
    a(f"v_cmp_ne_u32 vcc, 0, v33\ns_cmp_eq_u64 vcc, 0\ns_cbranch_scc1 L_pd_{name}\ns_sub_u32 s39, s39, 1\ns_cmp_lg_u32 s39, 0\ns_cbranch_scc1 L_px_{name}\nL_pd_{name}:")
    stamp(a,3)
    for jj in range(4):
        for p in range(4*jj,4*jj+4):
            r=RD+4*(p//3)+p%3; a(f"v_lshlrev_b32 v32, 16, v{r}\nv_and_b32 v33, 0xffff0000, v{r}\nv_pk_add_f32 v[{OWN+2*p}:{OWN+2*p+1}], v[{OWN+2*p}:{OWN+2*p+1}], v[32:33]")
        for r in range(4):
            e=OWN+8*jj+r; x=16+4*jj+r
            a(f"v_cvt_pk_bf16_f32 v35, v{e}, v{e+4}\nv_lshlrev_b32 v33, 16, v{x}\nv_and_b32 v34, 0xffff0000, v{x}\nv_lshlrev_b32 v{e}, 16, v35\nv_and_b32 v{e+4}, 0xffff0000, v35")
            a(f"v_add_f32 v33, v33, v{e}\nv_add_f32 v34, v34, v{e+4}\nv_cvt_pk_bf16_f32 v{x}, v33, v34")
        a(f"buffer_store_dwordx4 v[{16+4*jj}:{19+4*jj}], v5, s[24:27], s36 offen sc1\ns_add_u32 s36, s36, 32768")
```

```python
import sys
from common import *
from k_conv import *
from k_gemm import *
WS_FLG=0x4D00000; WS_NONCE=0x4D80000
LN_LDS=3*ST
S1=" sc1"
import k_gemm
def stamp(a,i=0):
    if STAMP: a("s_memrealtime s[74:75]\ns_waitcnt lgkmcnt(0)\ns_mov_b32 m0, s76\ns_add_u32 s76, s76, 1\nv_writelane_b32 v1, s74, m0")
k_gemm.stamp=stamp
def signal(a, ph, off, ex):
    a(f"s_add_u32 s66, {off}, s65\ns_add_u32 s66, s66, {ph*0x4000}\nv_mov_b32 v12, s64\nv_lshlrev_b32 v13, 10, v2")
    a("s_waitcnt vmcnt(0)\ns_barrier")
    n=f"sg{len(a.l)}"
    a(f"s_cmp_lg_u32 s20, 0\ns_cbranch_scc1 L_{n}\ns_mov_b64 exec, {ex}\nbuffer_store_dword v12, v13, s[32:35], s66 offen sc1\ns_mov_b64 exec, -1\nL_{n}:")
def wait(a, ph, idr, msk):
    n=f"wt{len(a.l)}"
    a(f"s_cmp_lg_u32 s20, 0\ns_cbranch_scc1 L_{n}d")
    a(f"s_add_u32 s66, {idr}, s65\ns_add_u32 s66, s66, {ph*0x4000}\nv_and_b32 v13, {msk}, v3")
    a(f"s_mov_b32 s67, 0x40000\nL_{n}:")
    a("buffer_load_dwordx4 v[8:11], v13, s[32:35], s66 offen sc1\ns_waitcnt vmcnt(0)\nv_xor_b32 v8, s64, v8\nv_xor_b32 v9, s64, v9\nv_xor_b32 v10, s64, v10\nv_xor_b32 v11, s64, v11\nv_or3_b32 v8, v8, v9, v10\nv_or_b32 v12, v8, v11\nv_cmp_ne_u32 vcc, 0, v12")
    a(f"s_cmp_eq_u64 vcc, 0\ns_cbranch_scc1 L_{n}d\ns_sub_u32 s67, s67, 1\ns_cmp_lg_u32 s67, 0\ns_cbranch_scc1 L_{n}\nL_{n}d:\ns_barrier")
def unpack(a,dst,src,n):
    for p in range(n): a(f"v_lshlrev_b32 v{dst+2*p}, 16, v{src+p}\nv_and_b32 v{dst+2*p+1}, 0xffff0000, v{src+p}")

def ln_addr(a):
    a("v_and_b32 v27, 7, v2\nv_lshrrev_b32 v28, 3, v2\ns_lshl_b32 s52, s20, 9\nv_lshlrev_b32 v14, 11, v27\nv_lshl_add_u32 v14, v28, 4, v14\nv_add_u32 v14, s52, v14")
    a("s_lshl_b32 s52, s20, 12\nv_lshlrev_b32 v15, 7, v28\nv_lshl_add_u32 v15, v27, 3, v15\nv_add_u32 v15, s52, v15")
    a(f"s_lshl_b32 s52, s20, 2\nv_lshlrev_b32 v24, 5, v27\nv_add_u32 v24, {LN_LDS}, v24\nv_lshrrev_b32 v25, 5, v2\nv_lshl_add_u32 v25, v25, 4, v24\nv_add_u32 v25, s52, v25")
    a("s_lshl_b32 s52, s20, 16\nv_lshrrev_b32 v26, 2, v28\nv_lshlrev_b32 v26, 13, v26\nv_and_b32 v28, 3, v28\nv_lshl_add_u32 v26, v28, 8, v26\nv_lshl_add_u32 v26, v27, 4, v26\nv_add_u32 v26, s52, v26")
    a("s_lshl_b32 s53, s16, 18\ns_lshr_b32 s52, s17, 1\ns_lshl_b32 s52, s52, 10\ns_add_u32 s53, s53, s52\ns_and_b32 s52, s17, 1\ns_lshl_b32 s52, s52, 7\ns_add_u32 s53, s53, s52\ns_add_u32 s53, s53, s61")
    a("s_lshl_b32 s52, s16, 4\ns_add_u32 s52, s52, s17\ns_lshl_b32 s52, s52, 14")
def lnq(a):
    a("s_load_dwordx2 s[4:5], s[0:1], 0"); ln_addr(a); a("s_waitcnt lgkmcnt(0)"); srd(a,24,4,5,1<<22)
    for i in range(4): a(f"buffer_load_dwordx4 v[{64+4*i}:{67+4*i}], v14, s[24:27], s52 offen offset:{128*i}")
def w1l(a):
    srd(a,28,52,53,3584*2048)
    a(f"s_lshl_b32 s46, s20, 8\ns_add_u32 s46, s46, s2\ns_cmp_ge_u32 s46, 896\ns_cselect_b32 s30, 0, s30")
    a(f"s_and_b32 s22, s2, 31\ns_lshr_b32 s23, s46, 5\ns_mul_i32 s46, s22, {32*7168}\ns_lshl_b32 s47, s23, 8\ns_add_u32 s46, s46, s47")
    a(f"v_mul_u32_u24 v114, {8*7168}, v113\nv_lshl_add_u32 v114, v112, 4, v114")
    for t in range(8): a(f"s_add_u32 s47, s46, {t*7168}\nbuffer_load_dwordx4 v[{80+4*t}:{83+4*t}], v114, s[28:31], s47 offen")
def w2l(a):
    srd(a,28,56,57,3584*2048)
    a("s_lshl_b32 s72, s20, 8\ns_add_u32 s72, s72, s2\ns_lshr_b32 s72, s72, 3")
    a("s_lshr_b32 s46, s72, 2\ns_lshl_b32 s46, s46, 18\ns_and_b32 s47, s72, 3\ns_lshl_b32 s47, s47, 12\ns_add_u32 s46, s46, s47\ns_lshl_b32 s47, s58, 8\ns_add_u32 s46, s46, s47")
    a("v_lshlrev_b32 v114, 16, v113\nv_lshl_add_u32 v114, v112, 2, v114")
    a("s_cmp_ge_u32 s72, 112\ns_cbranch_scc1 L_w2le")
    for t in range(8):
        a(f"s_add_u32 s47, s46, {(8*(t&3)+(t>>2))*2048}")
        for hq in range(4): a(f"buffer_load_dword a{144+16*(hq//2)+2*t+(hq&1)}, v114, s[28:31], s47 offen offset:{64*hq}")
    a("L_w2le:")
def w2s(a):
    a("s_cmp_ge_u32 s72, 112\ns_cbranch_scc1 L_w2se")
    for t in range(32): a(f"v_accvgpr_read_b32 v{16+t}, a{144+t}")
    a(f"s_mul_i32 s46, s58, {2*112*4096}\ns_lshl_b32 s47, s72, 12\ns_add_u32 s46, s46, s47\ns_add_u32 s46, s46, {WS_W2F}\ns_mov_b32 s72, 112")
    for hf in range(2):
        for x in range(4):
            o=48+16*hf+4*x; b=16+16*hf
            for p in range(4): a(f"v_perm_b32 v{o+p}, v{b+2*(2*p+1)+x//2}, v{b+2*(2*p)+x//2}, s{68+(x&1)}")
            a(f"buffer_store_dwordx4 v[{o}:{o+3}], v3, s[32:35], s46 offen offset:{x*1024} sc1")
        a(f"s_add_u32 s46, s46, {112*4096}")
    a("L_w2se:")
def front(a):
    a("s_load_dwordx4 s[4:7], s[0:1], 8\ns_load_dwordx4 s[8:11], s[0:1], 24\ns_load_dwordx2 s[12:13], s[0:1], 40\ns_load_dwordx2 s[14:15], s[0:1], 104\ns_load_dwordx4 s[52:55], s[0:1], 56\ns_load_dwordx2 s[56:57], s[0:1], 72")
    a("v_lshrrev_b32 v4, 6, v0\nv_and_b32 v2, 63, v0\nv_lshlrev_b32 v3, 4, v2\nv_readfirstlane_b32 s20, v4")
    a("s_and_b32 s58, s2, 7\ns_lshr_b32 s59, s2, 3\nv_and_b32 v124, 31, v0\nv_lshrrev_b32 v7, 5, v0")
    a("s_lshl_b32 s18, s59, 17\nv_lshlrev_b32 v9, 14, v7\nv_lshl_add_u32 v9, v124, 3, v9\nv_add_u32 v9, s18, v9\ns_lshl_b32 s19, s58, 8")
    a("v_subrev_u32 v4, 6144, v9\nv_and_b32 v4, 0x7fffffff, v4\nv_lshlrev_b32 v6, 5, v124\ns_lshl_b32 s36, s58, 10")
    a("s_waitcnt lgkmcnt(0)")
    srd(a,40,4,5,1<<22); srd(a,24,6,7,1<<22); srd(a,28,8,9,8192); srd(a,32,14,15,WS_SIZE)
    for r in range(3): a(f"v_add_u32 v5, {r*2048}, v4\nbuffer_load_dwordx2 v[{10+2*r}:{11+2*r}], v5, s[40:43], s19 offen")
    for r in range(8):
        if r%2==0: a(f"v_add_u32 v5, {r*2048}, v9")
        a(f"buffer_load_dwordx2 v[{16+2*r}:{17+2*r}], v5, s[40:43], s19 offen offset:{(r%2)*2048}")
        a(f"buffer_load_dwordx2 v[{32+2*r}:{33+2*r}], v5, s[24:27], s19 offen offset:{(r%2)*2048}")
    a("buffer_load_dwordx4 v[48:51], v6, s[28:31], s36 offen\nbuffer_load_dwordx4 v[52:55], v6, s[28:31], s36 offen offset:16")
    a(f"s_add_u32 s4, s14, {WS_NONCE}\ns_addc_u32 s5, s15, 0\ns_load_dword s64, s[4:5], 0")
    a("s_lshl_b32 s21, s58, 7\ns_lshl_b32 s18, s59, 2\ns_add_u32 s21, s21, s18\ns_lshl_b32 s18, s21, 1\ns_add_u32 s12, s12, s18\ns_addc_u32 s13, s13, 0\ns_load_dwordx2 s[44:45], s[12:13], 0")
    a("s_mov_b32 s68, 0x05040100\ns_mov_b32 s69, 0x07060302\nv_and_b32 v112, 15, v2\nv_lshrrev_b32 v113, 4, v2")
    RL=128
    a("s_cmp_lt_u32 s20, 2\ns_cbranch_scc1 L_w1l\ns_sub_u32 s48, s20, 2")
    srd(a,28,10,11,1<<22)
    a("s_lshl_b32 s46, s48, 1\ns_add_u32 s46, s46, s21\ns_lshl_b32 s46, s46, 12")
    for cc in range(2):
        for it in range(4):
            a(f"buffer_load_dwordx4 v[{RL+16*cc+4*it}:{RL+3+16*cc+4*it}], v3, s[28:31], s46 offen offset:{it*1024}")
            a(f"buffer_load_dword v{RL+32+4*cc+it}, v3, s[28:31], s46 offen offset:{it*1024+16}")
        a("s_add_u32 s46, s46, 4096")
    a("s_waitcnt vmcnt(16)\ns_branch L_kv")
    a("L_w1l:\ns_waitcnt vmcnt(0)")
    WA=64
    a("L_kv:"); stamp(a,1)
    KVL=65536
    a(f"v_mul_u32_u24 v8, 576, v124\nv_lshlrev_b32 v9, 4, v7\nv_sub_u32 v8, v8, v9\nv_add_u32 v8, {KVL+112}, v8")
    unpack(a,56,48,8)
    for c in range(4):
        for r in range(11):
            src=10+2*r+c//2
            a(f"v_lshlrev_b32 v{72+r}, 16, v{src}" if c%2==0 else f"v_and_b32 v{72+r}, 0xffff0000, v{src}")
        for r in range(8):
            src=32+2*r+c//2
            a(f"v_mul_f32 v{84+r}, v{56+4*c+3}, v{72+r}")
            a(f"v_lshlrev_b32 v{92}, 16, v{src}" if c%2==0 else f"v_and_b32 v{92}, 0xffff0000, v{src}")
            a(f"v_fmac_f32 v{84+r}, v{56+4*c+2}, v{73+r}\nv_fmac_f32 v{84+r}, v{56+4*c+1}, v{74+r}\nv_fmac_f32 v{84+r}, v{56+4*c}, v{75+r}")
            a(f"v_mul_f32 v{84+r}, v{84+r}, v92")
        for p in range(4): a(f"v_cvt_pk_bf16_f32 v{96+4*c+p}, v{84+7-2*p}, v{84+6-2*p}")
        a(f"ds_write_b128 v8, v[{96+4*c}:{99+4*c}] offset:{c*144}")
    a(f"s_mul_i32 s47, s20, {UR_STRIDE}\nv_mov_b32 v70, 0\nv_mov_b32 v71, 0\nv_lshlrev_b32 v7, 3, v2\nv_add_u32 v7, s47, v7\nds_write_b64 v7, v[70:71] offset:4096")
    a("s_waitcnt lgkmcnt(0)\ns_barrier")
    a(f"s_mul_i32 s64, s64, 0x9e3779b1\ns_add_u32 s64, s64, 0x7f4a7c15\ns_mov_b32 s65, {WS_FLG}")
    a("s_cmp_ge_u32 s20, 2\ns_cbranch_scc1 L_w1s")
    a(f"v_lshrrev_b32 v8, 3, v0\nv_mul_u32_u24 v8, 144, v8\nv_and_b32 v9, 7, v0\nv_lshl_add_u32 v8, v9, 4, v8\nv_add_u32 v8, {KVL}, v8\nv_lshlrev_b32 v9, 4, v0")
    a(f"s_sub_u32 s18, 31, s59\ns_lshl_b32 s18, s18, 17\ns_lshl_b32 s19, s58, 14\ns_add_u32 s18, s18, s19\ns_add_u32 s18, s18, {WS_UR}")
    for it in range(8): a(f"ds_read_b128 v[{16+4*it}:{19+4*it}], v8 offset:{it*16*144}")
    for it in range(8):
        a(f"s_waitcnt lgkmcnt({7-it})\nbuffer_store_dwordx4 v[{16+4*it}:{19+4*it}], v9, s[32:35], s18 offen offset:{(it&1)*2048} sc1")
        if it&1: a("s_add_u32 s18, s18, 4096")
    a("s_lshl_b32 s73, s58, 8\ns_lshl_b32 s72, s59, 2\ns_add_u32 s72, s72, s73")
    signal(a,0,"s72",1); stamp(a)
    wait(a,0,"s73",112); stamp(a)
    a("s_branch L_cv\nL_w1s:\ns_barrier")
    a(f"s_mul_i32 s48, s48, {2*HP_STRIDE}\ns_add_u32 s48, s48, {HP0}\nv_add_u32 v9, s48, v3\ns_waitcnt vmcnt(0)")
    for i in range(7): a(f"v_mov_b32 v{116+i}, 0")
    for cc in range(2):
        for it in range(4):
            b=RL+16*cc+4*it; o=56+4*it
            a(f"ds_write_b128 v9, v[{b}:{b+3}] offset:{cc*HP_STRIDE+32+it*1024}")
            a(f"v_alignbit_b32 v{o}, v{b+1}, v{b}, 16\nv_alignbit_b32 v{o+1}, v{b+2}, v{b+1}, 16\nv_alignbit_b32 v{o+2}, v{b+3}, v{b+2}, 16\nv_alignbit_b32 v{o+3}, v{RL+32+4*cc+it}, v{b+3}, 16")
            a(f"ds_write_b128 v9, v[{o}:{o+3}] offset:{cc*HP_STRIDE+HP_C1+32+it*1024}")
        h=cc*HP_STRIDE
        a(f"v_lshlrev_b32 v123, 16, v{RL+16*cc}\ns_mov_b64 exec, 1\nds_write_b128 v9, v[116:119] offset:{h}\nds_write_b128 v9, v[116:119] offset:{h+16}\nds_write_b128 v9, v[116:119] offset:{h+HP_C1}\nds_write_b128 v9, v[120:123] offset:{h+HP_C1+16}\ns_mov_b64 exec, -1\ns_waitcnt lgkmcnt(0)")
    a("s_lshl_b32 s47, s20, 8\ns_add_u32 s47, s47, s2\ns_cmp_ge_u32 s47, 540\ns_cbranch_scc1 L_wj")
    srd(a,28,54,55,7168)
    a(f"v_lshlrev_b32 v8, 2, v2\ns_lshl_b32 s47, s2, 8\nbuffer_load_dword v9, v8, s[28:31], s47 offen\nv_and_b32 v10, 3, v2\nv_lshlrev_b32 v10, 7, v10\nv_and_b32 v11, 60, v2\nv_add_u32 v10, v10, v11\ns_lshl_b32 s47, s2, 9\ns_add_u32 s47, s47, {WS_B1F}")
    a("s_waitcnt vmcnt(0)\nv_lshlrev_b32 v11, 16, v9\nv_and_b32 v12, 0xffff0000, v9\nbuffer_store_dword v11, v10, s[32:35], s47 offen sc1\nbuffer_store_dword v12, v10, s[32:35], s47 offen offset:64 sc1")
    a("L_wj:\ns_barrier")
    a("L_cv:")
    a(f"s_add_u32 s19, s20, s21\ns_lshl_b32 s19, s19, 7\ns_add_u32 s19, s19, {WS_UR}\ns_mul_i32 s18, s20, {UR_STRIDE}")
    a("v_lshrrev_b32 v4, 3, v2\nv_lshlrev_b32 v4, 17, v4\nv_and_b32 v5, 7, v2\nv_lshl_add_u32 v4, v5, 4, v4")
    for it in range(4): a(f"s_add_u32 m0, s18, {it*1024}\ns_add_u32 s22, s19, {it*(8<<17)}\nbuffer_load_dwordx4 v4, s[32:35], s22 offen sc1 lds")
    w1l(a); lnq(a)
    a(f"s_mul_i32 s47, s20, {UR_STRIDE}\ns_mul_i32 s48, s20, {HP_STRIDE}\ns_add_u32 s48, s48, {HP0}")
    a("s_lshr_b32 s49, s20, 1\ns_cmp_eq_u32 s49, 0\ns_cselect_b32 s49, s44, s45\ns_lshl_b32 s50, s49, 16\ns_and_b32 s49, s49, 0xffff0000\ns_bitcmp1_b32 s20, 0\ns_cselect_b32 s49, s49, s50")
    a("v_add_u32 v5, 1, v112\nv_lshrrev_b32 v5, 1, v5\nv_lshl_add_u32 v5, v113, 2, v5\nv_lshlrev_b32 v5, 2, v5")
    a(f"v_and_b32 v6, 1, v112\nv_xor_b32 v6, 1, v6\nv_mul_u32_u24 v6, {HP_C1}, v6\nv_add3_u32 v5, v5, v6, s48")
    for q in range(1,4): a(f"v_add_u32 v{5+q}, {1024*q}, v5")
    a(f"v_lshlrev_b32 v9, 5, v112\nv_sub_u32 v9, {2*2032-512*7}, v9\nv_lshl_add_u32 v9, v113, 4, v9\nv_add_u32 v9, s47, v9")
    for i in range(32): a(f"v_accvgpr_write_b32 a{i}, 0")
    a("s_waitcnt vmcnt(12)"); stamp(a,3)
    FA=[128,192]; FB=[160,224]
    def rd(rho,buf):
        L=[]
        for x in range(8):
            L.append(f"ds_read_b128 v[{FB[buf]+4*x}:{FB[buf]+4*x+3}], v9 offset:{512*(7-x)+64*rho}")
            o=(x%2)*128+16*rho
            L.append(f"ds_read2_b32 v[{FA[buf]+4*x}:{FA[buf]+4*x+1}], v{5+x//2} offset0:{o} offset1:{o+1}")
            L.append(f"ds_read2_b32 v[{FA[buf]+4*x+2}:{FA[buf]+4*x+3}], v{5+x//2} offset0:{o+2} offset1:{o+3}")
        return L
    for s in rd(0,0): a(s)
    a("s_mov_b32 s51, 4\nL_cvl:")
    for rho in range(2):
        buf=rho&1; a("s_waitcnt lgkmcnt(0)"); nxt=rd(rho+1,buf^1); n=0
        for aa in range(8):
            for b in range(8-aa):
                J=aa+b
                a(f"{MF} a[{4*J}:{4*J+3}], v[{FA[buf]+4*aa}:{FA[buf]+4*aa+3}], v[{FB[buf]+4*b}:{FB[buf]+4*b+3}], a[{4*J}:{4*J+3}]")
                if n<len(nxt): a(nxt[n]); n+=1
                elif rho==1 and n<len(nxt)+5: a(f"v_add_u32 v{5+n-len(nxt)}, 128, v{5+n-len(nxt)}"); n+=1
    a("s_sub_u32 s51, s51, 1\ns_cmp_lg_u32 s51, 0\ns_cbranch_scc1 L_cvl\ns_waitcnt lgkmcnt(0)")
    a(f"v_lshlrev_b32 v4, 5, v112\nv_lshl_add_u32 v4, v113, 3, v4\nv_add_u32 v5, s48, v4\nv_sub_u32 v4, {2*2044-512*7}, v4\nv_add_u32 v4, s47, v4")
    for J in range(8): a(f"ds_read_b64 v[{128+2*J}:{129+2*J}], v4 offset:{512*(7-J)}")
    for J in range(8):
        k0=128+2*J
        for r in range(4): a(f"v_accvgpr_read_b32 v{148+r}, a{4*J+r}")
        a(f"s_waitcnt lgkmcnt(7)\nv_and_b32 v144, 0xffff0000, v{k0+1}\nv_lshlrev_b32 v145, 16, v{k0+1}\nv_and_b32 v146, 0xffff0000, v{k0}\nv_lshlrev_b32 v147, 16, v{k0}")
        for r in range(4): a(f"v_fmac_f32 v{148+r}, s49, v{144+r}")
        a(f"v_cvt_pk_bf16_f32 v{152+2*J}, v148, v149\nv_cvt_pk_bf16_f32 v{153+2*J}, v150, v151\nds_write_b64 v5, v[{152+2*J}:{153+2*J}] offset:{512*J}")
    a(f"v_lshlrev_b32 v6, 2, v0\nv_add_u32 v6, {HP0}, v6\ns_waitcnt lgkmcnt(0)\ns_barrier")
    for it in range(4):
        for c in range(4): a(f"ds_read_b32 v{168+4*it+c}, v6 offset:{c*HP_STRIDE+it*1024}")
    a("v_lshrrev_b32 v7, 2, v0\nv_lshlrev_b32 v7, 14, v7\nv_and_b32 v8, 3, v0\nv_lshl_add_u32 v7, v8, 4, v7\ns_lshl_b32 s50, s21, 4")
    for it in range(4):
        b=168+4*it; o=184+4*it
        a(f"s_waitcnt lgkmcnt({12-4*it})\nv_perm_b32 v{o}, v{b+1}, v{b}, s68\nv_perm_b32 v{o+1}, v{b+3}, v{b+2}, s68\nv_perm_b32 v{o+2}, v{b+1}, v{b}, s69\nv_perm_b32 v{o+3}, v{b+3}, v{b+2}, s69")
        a(f"buffer_store_dwordx4 v[{o}:{o+3}], v7, s[32:35], s50 offen sc1\ns_add_u32 s50, s50, {64*16384}")
    a("s_lshl_b32 s46, s20, 8\ns_add_u32 s46, s46, s2\ns_cmp_ge_u32 s46, 896\ns_cbranch_scc1 L_we\ns_waitcnt vmcnt(8)")
    a(f"s_mul_i32 s46, s22, {14*1024}\ns_add_u32 s46, s46, {WS_W1F}\ns_lshl_b32 s23, s23, 3")
    for x in range(8):
        o=128+4*x; b=80
        a(f"s_add_u32 s47, s23, {x}\ns_mul_i32 s49, s47, 4682\ns_lshr_b32 s49, s49, 16\ns_mul_i32 s49, s49, {32*14-14}\ns_add_u32 s47, s47, s49\ns_lshl_b32 s47, s47, 10\ns_add_u32 s47, s47, s46")
        for p in range(4): a(f"v_perm_b32 v{o+p}, v{b+4*(2*p+1)+x//2}, v{b+4*(2*p)+x//2}, s{68+(x&1)}")
        a(f"buffer_store_dwordx4 v[{o}:{o+3}], v3, s[32:35], s47 offen sc1")
    a("L_we:")
X=32
def stats(a, off):
    a(f"v_pk_add_f32 v[28:29], v[{X}:{X+1}], v[{X+2}:{X+3}]\nv_pk_mul_f32 v[30:31], v[{X}:{X+1}], v[{X}:{X+1}]")
    for e in range(2,32,2):
        if e>2: a(f"v_pk_add_f32 v[28:29], v[28:29], v[{X+e}:{X+e+1}]")
        a(f"v_pk_fma_f32 v[30:31], v[{X+e}:{X+e+1}], v[{X+e}:{X+e+1}], v[30:31]")
    a("v_add_f32 v28, v28, v29\nv_add_f32 v29, v30, v31")
    a("s_nop 1\nv_permlane32_swap_b32 v28, v29\ns_nop 1\nv_add_f32 v28, v28, v29\nv_mov_b32 v29, v28\ns_nop 1\nv_permlane16_swap_b32 v28, v29\ns_nop 1\nv_add_f32 v28, v28, v29\ns_nop 1")
    a("v_add_f32_dpp v28, v28, v28 row_ror:8 row_mask:0xf bank_mask:0xf")
    a(f"ds_write_b32 v25, v28 offset:{off}\ns_waitcnt lgkmcnt(0)\ns_barrier\nds_read_b128 v[132:135], v24 offset:{off}\nds_read_b128 v[136:139], v24 offset:{off+16}")
    a("s_mov_b32 s54, 0x3a800000\ns_mov_b32 s55, 0x3727c5ac\ns_waitcnt lgkmcnt(0)")
    a("v_add_f32 v132, v132, v133\nv_add_f32 v134, v134, v135\nv_add_f32 v136, v136, v137\nv_add_f32 v138, v138, v139\nv_add_f32 v132, v132, v134\nv_add_f32 v136, v136, v138")
    a("v_mul_f32 v132, s54, v132\nv_mul_f32 v136, s54, v136\nv_fma_f32 v136, -v132, v132, v136\nv_max_f32 v136, 0, v136\nv_add_f32 v136, s55, v136\nv_rsq_f32 v136, v136\ns_nop 0\nv_mul_f32 v132, -v132, v136\nv_mov_b32 v137, v136\nv_mov_b32 v133, v132")
def g1_pre(a):
    g1_setup(a)
    for st in range(3):
        a(f"s_mov_b32 s44, {st*ST}")
        for s in g1_issue_w(): a(s)
    a("s_mov_b32 s44, 0\ns_and_b32 s21, s20, 1\ns_lshr_b32 s22, s20, 1")
    a(f"v_lshrrev_b32 v4, 4, v2\nv_lshlrev_b32 v4, 4, v4\ns_mul_i32 s23, s17, 896\ns_mul_i32 s24, s22, 448\ns_add_u32 s23, s23, s24\ns_add_u32 s23, s23, {WS_B1F}")
    for i in range(7): a(f"buffer_load_dwordx4 v[{104+4*i}:{107+4*i}], v4, s[32:35], s23 offen offset:{64*i}")
def main():
    a=Asm()
    a("s_cmp_ge_u32 s2, 256\ns_cbranch_scc1 L_end\ns_mov_b32 s76, 0"); stamp(a)
    tilemap(a,4,8); a("s_lshl_b32 s70, s16, 4\ns_add_u32 s70, s70, s17\ns_movk_i32 s71, 1008\ns_lshl_b32 s70, s70, 2\ns_and_b32 s77, s2, 7\ns_lshl_b32 s77, s77, 10\ns_lshl_b32 s79, s16, 8\ns_lshl_b32 s78, s17, 2\ns_add_u32 s78, s78, s79\ns_mov_b64 s[80:81], 0xff")
    a(f"s_mov_b32 s60, 0\ns_mov_b32 s61, {WS_XN[0]}\ns_mov_b32 s62, {WS_X1}\ns_mov_b32 s63, {WS_H[0]}")
    front(a); stamp(a)
    signal(a,1,"s70","s[80:81]"); stamp(a)
    w2l(a); unpack(a,X,64,16); stats(a,0)
    a("s_waitcnt vmcnt(16)"); wait(a,1,"s77",1008); stamp(a)
    for i in range(4):
        for hh in range(2): a(f"buffer_load_dwordx2 v[{80+4*i+2*hh}:{81+4*i+2*hh}], v15, s[32:35], s52 offen offset:{i*1024+hh*64} sc1")
    g1_pre(a)
    for i in range(64): a(f"v_accvgpr_write_b32 a{i}, 0")
    a("s_waitcnt vmcnt(28)")
    for p in range(16): a(f"v_accvgpr_write_b32 a{128+p}, v{80+p}")
    a("L_lnc:"); stamp(a)
    for p in range(16):
        a(f"v_lshlrev_b32 v28, 16, v{80+p}\nv_and_b32 v29, 0xffff0000, v{80+p}\nv_pk_fma_f32 v[30:31], v[{X+2*p}:{X+2*p+1}], v[136:137], v[132:133]\nv_pk_fma_f32 v[{X+2*p}:{X+2*p+1}], v[30:31], v[28:29], v[{X+2*p}:{X+2*p+1}]\nv_cvt_pk_bf16_f32 v{64+p}, v{X+2*p}, v{X+2*p+1}")
    a("s_add_u32 s52, s52, s62")
    unpack(a,X,64,16)
    for i in range(4): a(f"buffer_store_dwordx4 v[{64+4*i}:{67+4*i}], v14, s[32:35], s52 offen offset:{128*i} sc1")
    stats(a,256)
    for i in range(4):
        for e in range(8*i,8*i+8,2): a(f"v_pk_fma_f32 v[{X+e}:{X+e+1}], v[{X+e}:{X+e+1}], v[136:137], v[132:133]")
        for p in range(4*i,4*i+4): a(f"v_cvt_pk_bf16_f32 v{80+p}, v{X+2*p}, v{X+2*p+1}")
        a(f"buffer_store_dwordx4 v[{80+4*i}:{83+4*i}], v26, s[32:35], s53 offen sc1\ns_add_u32 s53, s53, 16384")
    a("s_waitcnt vmcnt(8)")
    for i in range(7):
        for j in range(4):
            for r in (0,2): a(f"v_pk_mov_b32 v[{132+4*(4*i+j)+r}:{133+4*(4*i+j)+r}], v[{104+4*i+r}:{105+4*i+r}], v[{104+4*i+r}:{105+4*i+r}] op_sel:[0,1]")
    stamp(a); signal(a,2,"s78",1); stamp(a); w2s(a)
    wait(a,2,"s79",48); stamp(a)
    g1_body(a,"g1",mega=True)
    stamp(a); signal(a,3,"s70","s[80:81]"); stamp(a)
    g2_body(a,"g2",mega=lambda: (wait(a,3,"s77","s71"), stamp(a)))
    stamp(a)
    a("s_cmp_lg_u32 s60, 0\ns_cbranch_scc1 L_fin")
    signal(a,4,"s78",1); stamp(a)
    a(f"s_mov_b32 s60, 1\ns_mov_b32 s71, 48\ns_mov_b32 s70, s78\ns_mov_b32 s77, s79\ns_mov_b32 s80, 1\ns_mov_b32 s61, {WS_XN[1]}\ns_mov_b32 s62, {WS_X3}\ns_mov_b32 s63, {WS_H[1]}")
    g1_pre(a); ln_addr(a)
    for p in range(16): a(f"v_accvgpr_read_b32 v{80+p}, a{128+p}")
    a(f"s_or_b32 s54, s2, s20\ns_cmp_lg_u32 s54, 0\ns_cbranch_scc1 L_nn\nv_mov_b32 v12, s64\nv_mov_b32 v13, 0\ns_mov_b32 s54, {WS_NONCE}\ns_mov_b64 exec, 1\nbuffer_store_dword v12, v13, s[32:35], s54 offen sc1\ns_mov_b64 exec, -1\nL_nn:")
    wait(a,4,"s79",48); stamp(a)
    a(f"s_add_u32 s54, s52, {WS_X2}\ns_add_u32 s65, s65, {3*0x4000}")
    for i in range(4): a(f"buffer_load_dwordx4 v[{64+4*i}:{67+4*i}], v14, s[32:35], s54 offen offset:{128*i} sc1")
    for i in range(64): a(f"v_accvgpr_write_b32 a{i}, 0")
    a("s_waitcnt vmcnt(0)")
    unpack(a,X,64,16); stats(a,0)
    a("s_branch L_lnc\nL_fin:")
    if STAMP:
        a("s_waitcnt vmcnt(0)"); stamp(a)
        a(f"v_lshlrev_b32 v2, 2, v0\ns_lshl_b32 s74, s2, 10\ns_add_u32 s74, s74, {WS_DBG}\nv_writelane_b32 v1, s76, 63\nbuffer_store_dword v1, v2, s[32:35], s74 offen")
    a("L_end:\ns_endpgm")
    N="interleave_layers__ssm_conv_h3__dense_activation_squared_relu__prompt"
    hdr="".join(l for l in open(f"cdna_kernels/{N}.s.ref").readlines()[:15])
    out=sys.argv[1] if len(sys.argv)>1 else f"cdna_kernels/{N}.s"
    t=assemble_file([(N+"_kernel",256,256,LN_LDS+1024)],[(N+"_kernel",a.text(),kernel_desc(N+"_kernel",512,256))])
    if not os.environ.get("LIST"): t=t.replace(f"kernel={N}_kernel ","")
    open(out,"w").write(hdr+t)
main()
```

```python
from common import *
from k_conv import *
MF="v_mfma_f32_16x16x32_bf16"
G1MAP=eval(os.environ.get("G1MAP","(8,4)"))
LSC=os.environ.get("LSC","").replace("_"," ")
def tilemap(a, mtx, ntx):
    import math
    lg=lambda x:int(math.log2(x)); nxn=16//ntx
    a(f"s_and_b32 s18, s2, 7\ns_lshr_b32 s19, s2, 3\ns_lshr_b32 s16, s18, {lg(nxn)}\ns_lshl_b32 s16, s16, {lg(mtx)}\ns_lshr_b32 s17, s19, {lg(ntx)}\ns_add_u32 s16, s16, s17")
    a(f"s_and_b32 s17, s18, {nxn-1}\ns_lshl_b32 s17, s17, {lg(ntx)}\ns_and_b32 s19, s19, {ntx-1}\ns_add_u32 s17, s17, s19")
ST=45056
PT=int(os.environ.get("PT","1"))
def g1_setup(a):
    a("s_lshl_b32 s40, s20, 12\ns_mul_i32 s41, s20, 7168")
    a(f"s_lshl_b32 s42, s16, 18\ns_add_u32 s42, s42, s40\ns_add_u32 s42, s42, s61")
    a(f"s_mul_i32 s43, s17, 458752\ns_add_u32 s43, s43, s41\ns_add_u32 s43, s43, {WS_W1F}\ns_add_u32 s41, s41, 16384\ns_mov_b32 s44, 0")
def g1_issue_w():
    L=[f"s_add_u32 m0, s41, s44\ns_add_u32 s45, s43, 4096\nbuffer_load_dwordx4 v3, s[32:35], s43 offen lds"]
    for i in range(1,4): L.append(f"buffer_load_dwordx4 v3, s[32:35], s43 offen offset:{i*1024} lds")
    L.append(f"s_add_u32 m0, m0, 4096\ns_add_u32 s43, s43, 28672\nbuffer_load_dwordx4 v3, s[32:35], s45 offen lds")
    for i in range(1,3): L.append(f"buffer_load_dwordx4 v3, s[32:35], s45 offen offset:{i*1024} lds")
    return L
def g1_issue_x():
    L=[f"s_add_u32 m0, s40, s44\ns_add_u32 s44, s44, {ST}\nbuffer_load_dwordx4 v3, s[32:35], s42 offen lds{LSC}"]
    for i in range(1,4): L.append(f"buffer_load_dwordx4 v3, s[32:35], s42 offen offset:{i*1024} lds{LSC}")
    L[-1]+=f"\ns_add_u32 s42, s42, 16384\ns_cmp_eq_u32 s44, {3*ST}\ns_cselect_b32 s44, 0, s44"
    return L
def w2rel_loads(a, R, name):
    a("s_load_dwordx2 s[4:5], s[0:1], 72\ns_lshl_b32 s46, s2, 2\ns_add_u32 s46, s46, s20\ns_waitcnt lgkmcnt(0)")
    srd(a,28,4,5,3584*2048)
    a("s_and_b32 s47, s46, 7\ns_lshr_b32 s48, s46, 3\ns_lshr_b32 s49, s48, 2\ns_lshl_b32 s49, s49, 18\ns_and_b32 s50, s48, 3\ns_lshl_b32 s50, s50, 12\ns_add_u32 s49, s49, s50\ns_lshl_b32 s50, s47, 8\ns_add_u32 s49, s49, s50")
    a("v_lshrrev_b32 v10, 4, v2\nv_lshlrev_b32 v10, 16, v10\nv_and_b32 v11, 15, v2\nv_lshl_add_u32 v10, v11, 3, v10")
    for hf in range(2):
        for t in range(8):
            a(f"s_add_u32 s50, s49, {(8*(t&3)+(t>>2))*2048}\nbuffer_load_dwordx2 v[{R+16*hf+2*t}:{R+1+16*hf+2*t}], v10, s[28:31], s50 offen offset:{128*hf}")
    a(f"s_mul_i32 s49, s47, {2*112*4096}\ns_lshl_b32 s50, s48, 12\ns_add_u32 s49, s49, s50\ns_add_u32 s49, s49, {WS_W2F}")
    a("s_mov_b32 s47, 0x05040100\ns_mov_b32 s48, 0x07060302")
def w2rel_stores(a, R, O):
    for hf in range(2):
        for x in range(4):
            o=O+16*hf+4*x
            for p in range(4): a(f"v_perm_b32 v{o+p}, v{R+16*hf+2*(2*p+1)+x//2}, v{R+16*hf+2*(2*p)+x//2}, s{47+(x&1)}")
            a(f"buffer_store_dwordx4 v[{o}:{o+3}], v3, s[32:35], s49 offen offset:{x*1024}{SC}")
        a(f"s_add_u32 s49, s49, {112*4096}")
def g1_body(a, name, mega=False):
    P=16; Q=60; BI=104; R=132; O=164
    if mega:
        for s in g1_issue_x()+g1_issue_x()+g1_issue_x(): a(s)
    else:
      a("s_and_b32 s21, s20, 1\ns_lshr_b32 s22, s20, 1")
      a(f"v_lshrrev_b32 v4, 4, v2\nv_lshlrev_b32 v4, 4, v4\ns_mul_i32 s23, s17, 896\ns_mul_i32 s24, s22, 448\ns_add_u32 s23, s23, s24\ns_add_u32 s23, s23, {WS_B1F}")
      for i in range(7): a(f"buffer_load_dwordx4 v[{BI+4*i}:{BI+4*i+3}], v4, s[32:35], s23 offen offset:{64*i}")
      for s in g1_issue_w()+g1_issue_x()+g1_issue_w()+g1_issue_x(): a(s)
    a("s_lshl_b32 s24, s21, 12\ns_mul_i32 s25, s22, 7168\ns_add_u32 s25, s25, 16384")
    a("v_add_u32 v5, s24, v3\nv_add_u32 v8, s25, v3\nv_mov_b32 v6, v5\nv_mov_b32 v9, v8\ns_mov_b32 s36, 0")
    a(f"s_mul_i32 s26, s16, 917504\ns_mul_i32 s27, s17, {7*8192}\ns_add_u32 s26, s26, s27\ns_lshl_b32 s27, s21, 12\ns_add_u32 s26, s26, s27\ns_add_u32 s26, s26, s63")
    def reads(kbl,R):
        w=[f"ds_read_b128 v[{R+16+4*i}:{R+19+4*i}], v9 offset:{kbl*14336+i*1024}" for i in range(7)]
        x=[f"ds_read_b128 v[{R+4*j}:{R+4*j+3}], v6 offset:{kbl*8192+j*1024}" for j in range(4)]
        return [w[0]]+x+w[1:]
    def mfmas(R, extra):
        c=0
        for i in range(7):
            for j in range(4):
                d=132+4*(4*i+j)
                a(f"{MF} v[{d}:{d+3}], v[{R+16+4*i}:{R+19+4*i}], v[{R+4*j}:{R+4*j+3}], v[{d}:{d+3}]")
                if c in extra: a(extra[c])
                c+=1
    if not mega: a("s_waitcnt vmcnt(22)")
    for i in range(0 if mega else 7):
        for j in range(4):
            for r in range(4): a(f"v_accvgpr_write_b32 a{4*(4*i+j)+r}, v{BI+4*i+r}")
    a(f"s_waitcnt vmcnt({4 if mega else 11})\ns_barrier"); stamp(a,1)
    if mega: mega()
    for s in reads(0,P): a(s)
    for s in ([] if mega else g1_issue_w()+g1_issue_x()): a(s)
    nxt=[f"s_add_u32 s36, s36, {ST}\ns_cmp_eq_u32 s36, {3*ST}\ns_cselect_b32 s36, 0, s36","v_add_u32 v6, s36, v5","v_add_u32 v9, s36, v8"]
    def step(vm, dma, last=False, loop=None):
        a("s_waitcnt lgkmcnt(0)")
        ex=dict(enumerate(reads(1,Q)+([] if last else nxt)))
        d=g1_issue_w()+g1_issue_x() if dma else []
        if not last: ex[17]=f"s_waitcnt vmcnt({vm}) lgkmcnt(0)\ns_barrier"
        for k in range(min(4,len(d))): ex[19+2*k]=d[k]
        mfmas(P, ex)
        if last: a("s_waitcnt lgkmcnt(0)")
        ex=dict(enumerate([] if last else reads(0,P)))
        for k in range(4,len(d)): ex[12+2*(k-4)]=d[k]
        if PT and (dma or vm==12): ex[11]="buffer_store_dwordx4 v[104:107], v3, s[32:35], s38 offen sc1\ns_add_u32 s38, s38, 1024"
        if loop: ex[26]="s_sub_u32 s37, s37, 1\ns_cmp_lg_u32 s37, 0"
        mfmas(Q, ex)
        if loop: a(f"s_cbranch_scc1 {loop}")
    a(f"s_lshl_b32 s27, s21, 12\ns_sub_u32 s38, s26, s27\ns_mul_i32 s27, s20, 14336\ns_add_u32 s38, s38, s27\ns_mov_b32 s37, 13\nL_cl_{name}:"); step(11+PT,True,loop=f"L_cl_{name}")
    step(11+PT,False); step(0,False); step(0,False,last=True)
    a("s_nop 7"); stamp(a,3)
    def act(d, T, U):
        U=132+d
        for r in range(4): a(f"v_max_f32 v{U+r}, 0, v{U+r}")
        a(f"v_pk_mul_f32 v[{U}:{U+1}], v[{U}:{U+1}], v[{U}:{U+1}]\nv_pk_mul_f32 v[{U+2}:{U+3}], v[{U+2}:{U+3}], v[{U+2}:{U+3}]")
        a(f"v_cvt_pk_bf16_f32 v{T}, v{U}, v{U+1}\nv_cvt_pk_bf16_f32 v{T+1}, v{U+2}, v{U+3}")
    a(f"s_cmp_eq_u32 s22, 1\ns_cbranch_scc1 L_ep1_{name}")
    for wn in range(2):
        if wn==1: a(f"s_branch L_epd_{name}\nL_ep1_{name}:")
        T=P
        groups=[(0,[0,1]),(1,[2,3]),(2,[4,5]),(3,[6])] if wn==0 else [(3,[0]),(4,[1,2]),(5,[3,4]),(6,[5,6])]
        for u,ii in groups:
            a(f"s_add_u32 s27, s26, {u*8192}")
            for j in range(4):
                for q,i in enumerate(ii): act(4*(4*i+j), T+2*q, BI+4*q)
                if len(ii)==2: a(f"buffer_store_dwordx4 v[{T}:{T+3}], v3, s[32:35], s27 offen offset:{j*1024}{SC}")
                else: a(f"buffer_store_dwordx2 v[{T}:{T+1}], v3, s[32:35], s27 offen offset:{j*1024+8*wn}{SC}")
                T+=4
    a(f"L_epd_{name}:")
def gen_g1(name):
    a=Asm(); a(f"B_{name}:")
    a(f"s_cmp_ge_u32 s2, 256\ns_cbranch_scc1 L_end_{name}")
    stamp(a,0)
    a("s_load_dwordx2 s[14:15], s[0:1], 104")
    a("v_lshrrev_b32 v1, 6, v0\nv_and_b32 v2, 63, v0\nv_lshlrev_b32 v3, 4, v2\nv_readfirstlane_b32 s20, v1")
    tilemap(a,*G1MAP)
    g1_setup(a)
    a("s_waitcnt lgkmcnt(0)")
    srd(a,32,14,15,WS_SIZE)
    g1_body(a,name)
    stamp(a,4); stamp_out(a,name,5)
    a(f"L_end_{name}:\ns_endpgm")
    return a.text(), (196+112,196,256,256,3*ST)

WS_XCH=0x6000000
def g2_body(a, name, mega):
    a("s_load_dwordx4 s[4:7], s[0:1], 80\ns_load_dwordx2 s[14:15], s[0:1], 104")
    a("s_lshr_b32 s46, s17, 3\ns_and_b32 s47, s20, 1\ns_and_b32 s48, s17, 7\ns_lshl_b32 s48, s48, 1\ns_lshr_b32 s23, s20, 1\ns_add_u32 s48, s48, s23\ns_mul_i32 s49, s46, 56\ns_lshl_b32 s44, s20, 12")
    a(f"s_mul_i32 s21, s16, 917504\ns_lshl_b32 s22, s49, 13\ns_add_u32 s21, s21, s22\ns_add_u32 s21, s21, s63\ns_add_u32 s21, s21, s44")
    a(f"s_mul_i32 s22, s48, 458752\ns_lshl_b32 s49, s49, 1\ns_add_u32 s49, s49, s47\ns_lshl_b32 s49, s49, 11\ns_add_u32 s22, s22, s49\ns_add_u32 s22, s22, {WS_W2F}")
    a("s_waitcnt lgkmcnt(0)")
    srd(a,28,4,5,2048)
    srd(a,24,6,7,1<<22)
    a("v_and_b32 v5, 15, v2\nv_lshlrev_b32 v5, 11, v5\nv_lshrrev_b32 v6, 4, v2\nv_lshlrev_b32 v6, 4, v6\nv_add_u32 v5, v5, v6\nv_add_u32 v4, 4096, v3\nv_add_u32 v7, 8192, v3")
    a("s_lshl_b32 s36, s16, 18\ns_lshl_b32 s37, s46, 17\ns_add_u32 s36, s36, s37\ns_lshl_b32 s37, s48, 1\ns_add_u32 s37, s37, s47\ns_lshl_b32 s37, s37, 6\ns_add_u32 s36, s36, s37\ns_add_u32 s38, s36, s62")
    a(f"s_mul_i32 s49, s46, {(WS_Y-WS_UR-(1<<17))&0xffffffff:#x}\ns_cmp_eq_u32 s60, 0\ns_cselect_b32 s49, s49, 0\ns_cselect_b32 s41, 0x40000000, 0\ns_add_u32 s38, s38, s49\nv_or_b32 v32, s41, v5")
    a(f"s_lshl_b32 s50, s17, 2\ns_add_u32 s50, s50, s20\ns_lshl_b32 s50, s50, 13\ns_xor_b32 s51, s50, {32<<13}\ns_mul_i32 s49, s16, 917504\ns_add_u32 s49, s49, {WS_H[0]}\ns_add_u32 s50, s50, s49\ns_add_u32 s51, s51, s49")
    P=36; Q=68; W=104; NS=int(os.environ.get("NS","3"))
    def wld(s):
        R=W+16*(s%8); L=[f"buffer_load_dwordx4 v[{R+4*i}:{R+4*i+3}], v{3+i//2}, s[32:35], s22 offen offset:{(i&1)*1024}" for i in range(4)]
        L[-1]+="\ns_add_u32 s22, s22, 8192"; return L
    def hld(s):
        L=[f"buffer_load_dwordx4 v3, s[32:35], s21 offen offset:{i*1024} lds" for i in range(4)]
        L[0]=f"s_add_u32 m0, s44, {(s%8)*16384}\ns_nop 0\n"+L[0]; L[-1]+="\ns_add_u32 s21, s21, 16384"; return L
    def reads(s,kbl,R):
        L=[f"ds_read_b128 v[{R+4*j}:{R+4*j+3}], v{102+(s%8)//4} offset:{(s%4)*16384+kbl*8192+j*1024}" for j in range(8)]
        return [L[2*i]+"\n"+L[2*i+1] for i in range(4)]
    BP=int(os.environ.get("BP","13"))
    def mfmas(R, Wr, ex):
        for c in range(16):
            a(f"{MF} a[{4*c}:{4*c+3}], v[{Wr+4*(c&1)}:{Wr+4*(c&1)+3}], v[{R+4*(c//2)}:{R+4*(c//2)+3}], a[{4*c}:{4*c+3}]")
            if c in ex: a(ex[c])
    def step(s, vm, d, last=False, loop=None):
        a("s_waitcnt lgkmcnt(0)")
        ex=dict(enumerate(reads(s,1,Q))); d=list(d)
        for c in range(5,BP,2):
            if len(d)>4: ex[c]=d.pop(0)
        if not last: ex[BP]=f"s_waitcnt vmcnt({vm})\ns_barrier"
        mfmas(P, W+16*(s%8), ex)
        a("s_waitcnt lgkmcnt(0)")
        ex=dict(enumerate([] if last else reads(s+1,0,P)))
        for c in range(5,15,2):
            if d: ex[c]=d.pop(0)
        if loop: ex[15]="s_sub_u32 s39, s39, 1\ns_cmp_lg_u32 s39, 0"
        mfmas(Q, W+16*(s%8)+8, ex)
        if loop: a(f"s_cbranch_scc1 {loop}")
    a("v_mov_b32 v102, v3\nv_add_u32 v103, 0x10000, v3")
    for s in range(NS):
        for x in wld(s): a(x)
    mega()
    for s in range(NS):
        for x in hld(s): a(x)
    assert NS==3
    a(f"s_waitcnt vmcnt(4)\ns_barrier")
    for x in reads(0,0,P): a(x)
    NL=(28-NS)//8
    a(f"s_mov_b32 s39, {NL}\nL_cl_{name}:")
    for s in range(8): step(s,8*NS-12,wld(s+NS)+hld(s+NS),loop=f"L_cl_{name}" if s==7 else None)
    ex=[f"s_add_u32 s49, s38, {jj*32768}\nbuffer_load_dwordx4 v[{16+4*jj}:{19+4*jj}], v32, s[32:35], s49 offen sc1" for jj in range(4)]
    ex[0]+="\nbuffer_load_dwordx4 v[8:11], v6, s[28:31], s37 offen"
    for s in range(8*NL,28):
        if s+NS<28: step(s,8*NS-12,wld(s+NS)+hld(s+NS))
        else: step(s,max(0,8*(26-s))+(5 if s+NS>28 else 0),ex if s+NS==28 else [],last=s==27)
    OWN=36; EX=104; RD=152
    for t in range(6): a(f"v_mov_b32 v{EX+4*t+3}, s64")
    a("s_nop 4")
    a("s_nop 7"); stamp(a,3)
    a(f"s_cmp_lg_u32 s60, 0\ns_cbranch_scc1 L_l1_{name}\ns_sub_u32 s49, s46, 1\ns_waitcnt vmcnt(0)")
    for r in range(4): a(f"v_and_b32 v{8+r}, s49, v{8+r}\nv_lshlrev_b32 v{16+r}, 16, v{8+r}\nv_and_b32 v{20+r}, 0xffff0000, v{8+r}")
    for tb in range(8):
        T=36+8*tb
        for e in range(8): a(f"v_accvgpr_read_b32 v{T+e}, a{8*tb+e}")
        for e in range(0,8,2): a(f"v_pk_add_f32 v[{T+e}:{T+e+1}], v[{T+e}:{T+e+1}], v[{16+e}:{17+e}]")
        for r in range(4): a(f"v_cvt_pk_bf16_f32 v{T+r}, v{T+r}, v{T+4+r}")
        a(f"buffer_store_dwordx4 v[{T}:{T+3}], v5, s[32:35], s38 offen sc1\ns_add_u32 s38, s38, 32768")
    a(f"s_branch L_g2e\nL_l1_{name}:\ns_cmp_eq_u32 s46, 1\ns_cbranch_scc1 L_k1_{name}")
    for k in range(2):
        if k==1: a(f"s_branch L_kd_{name}\nL_k1_{name}:")
        for t in range(6):
            for u in range(6 if t<5 else 2): a(f"v_accvgpr_read_b32 v{128+u}, a{32*(1-k)+6*t+u}")
            for u in range(3 if t<5 else 1): a(f"v_cvt_pk_bf16_f32 v{EX+4*t+u}, v{128+2*u}, v{129+2*u}")
            a(f"buffer_store_dwordx4 v[{EX+4*t}:{EX+4*t+3}], v{[3,4,7][t//4]}, s[32:35], s50 offen offset:{(t%4)*1024} sc1")
        for t in range(32): a(f"v_accvgpr_read_b32 v{OWN+t}, a{32*k+t}")
    a(f"L_kd_{name}:\ns_waitcnt vmcnt(6)\ns_mov_b32 s39, 0x40000")
    for r in range(4):
        a(f"v_lshlrev_b32 v33, 16, v{8+r}\nv_and_b32 v34, 0xffff0000, v{8+r}")
        for jj in range(4): a(f"v_add_f32 v{OWN+8*jj+r}, v{OWN+8*jj+r}, v33\nv_add_f32 v{OWN+8*jj+4+r}, v{OWN+8*jj+4+r}, v34")
    a(("" if os.environ.get("ND") else "s_waitcnt vmcnt(0)\n")+f"L_px_{name}:")
    for t in range(6): a(f"buffer_load_dwordx4 v[{RD+4*t}:{RD+4*t+3}], v{[3,4,7][t//4]}, s[32:35], s51 offen offset:{(t%4)*1024} sc1")
    a(f"s_waitcnt vmcnt(0)\nv_mov_b32 v33, 0")
    for t in range(0,6,2): a(f"v_xor_b32 v34, s64, v{RD+4*t+3}\nv_xor_b32 v35, s64, v{RD+4*t+7}\nv_or3_b32 v33, v33, v34, v35")
    a(f"v_cmp_ne_u32 vcc, 0, v33\ns_cmp_eq_u64 vcc, 0\ns_cbranch_scc1 L_pd_{name}\ns_sub_u32 s39, s39, 1\ns_cmp_lg_u32 s39, 0\ns_cbranch_scc1 L_px_{name}\nL_pd_{name}:")
    stamp(a,3)
    for jj in range(4):
        for p in range(4*jj,4*jj+4):
            r=RD+4*(p//3)+p%3; a(f"v_lshlrev_b32 v32, 16, v{r}\nv_and_b32 v33, 0xffff0000, v{r}\nv_pk_add_f32 v[{OWN+2*p}:{OWN+2*p+1}], v[{OWN+2*p}:{OWN+2*p+1}], v[32:33]")
        for r in range(4):
            e=OWN+8*jj+r; x=16+4*jj+r
            a(f"v_cvt_pk_bf16_f32 v35, v{e}, v{e+4}\nv_lshlrev_b32 v33, 16, v{x}\nv_and_b32 v34, 0xffff0000, v{x}\nv_lshlrev_b32 v{e}, 16, v35\nv_and_b32 v{e+4}, 0xffff0000, v35")
            a(f"v_add_f32 v33, v33, v{e}\nv_add_f32 v34, v34, v{e+4}\nv_cvt_pk_bf16_f32 v{x}, v33, v34")
        a(f"buffer_store_dwordx4 v[{16+4*jj}:{19+4*jj}], v5, s[24:27], s36 offen sc1\ns_add_u32 s36, s36, 32768")
```

```python
import sys
from common import *
from k_conv import *
from k_gemm import *
WS_FLG=0x4D00000; WS_NONCE=0x4D80000
LN_LDS=3*ST
S1=" sc1"
import k_gemm
def stamp(a,i=0):
    if STAMP: a("s_memrealtime s[74:75]\ns_waitcnt lgkmcnt(0)\ns_mov_b32 m0, s76\ns_add_u32 s76, s76, 1\nv_writelane_b32 v1, s74, m0")
k_gemm.stamp=stamp
def signal(a, ph, off, ex):
    a(f"s_add_u32 s66, {off}, s65\ns_add_u32 s66, s66, {ph*0x4000}\nv_mov_b32 v12, s64\nv_lshlrev_b32 v13, 10, v2")
    a("s_waitcnt vmcnt(0)\ns_barrier")
    n=f"sg{len(a.l)}"
    a(f"s_cmp_lg_u32 s20, 0\ns_cbranch_scc1 L_{n}\ns_mov_b64 exec, {ex}\nbuffer_store_dword v12, v13, s[32:35], s66 offen sc1\ns_mov_b64 exec, -1\nL_{n}:")
def wait(a, ph, idr, msk):
    n=f"wt{len(a.l)}"
    a(f"s_cmp_lg_u32 s20, 0\ns_cbranch_scc1 L_{n}d")
    a(f"s_add_u32 s66, {idr}, s65\ns_add_u32 s66, s66, {ph*0x4000}\nv_and_b32 v13, {msk}, v3")
    a(f"s_mov_b32 s67, 0x40000\nL_{n}:")
    a("buffer_load_dwordx4 v[8:11], v13, s[32:35], s66 offen sc1\ns_waitcnt vmcnt(0)\nv_xor_b32 v8, s64, v8\nv_xor_b32 v9, s64, v9\nv_xor_b32 v10, s64, v10\nv_xor_b32 v11, s64, v11\nv_or3_b32 v8, v8, v9, v10\nv_or_b32 v12, v8, v11\nv_cmp_ne_u32 vcc, 0, v12")
    a(f"s_cmp_eq_u64 vcc, 0\ns_cbranch_scc1 L_{n}d\ns_sub_u32 s67, s67, 1\ns_cmp_lg_u32 s67, 0\ns_cbranch_scc1 L_{n}\nL_{n}d:\ns_barrier")
def unpack(a,dst,src,n):
    for p in range(n): a(f"v_lshlrev_b32 v{dst+2*p}, 16, v{src+p}\nv_and_b32 v{dst+2*p+1}, 0xffff0000, v{src+p}")

def ln_addr(a):
    a("v_and_b32 v27, 7, v2\nv_lshrrev_b32 v28, 3, v2\ns_lshl_b32 s52, s20, 9\nv_lshlrev_b32 v14, 11, v27\nv_lshl_add_u32 v14, v28, 4, v14\nv_add_u32 v14, s52, v14")
    a("s_lshl_b32 s52, s20, 12\nv_lshlrev_b32 v15, 7, v28\nv_lshl_add_u32 v15, v27, 3, v15\nv_add_u32 v15, s52, v15")
    a(f"s_lshl_b32 s52, s20, 2\nv_lshlrev_b32 v24, 5, v27\nv_add_u32 v24, {LN_LDS}, v24\nv_lshrrev_b32 v25, 5, v2\nv_lshl_add_u32 v25, v25, 4, v24\nv_add_u32 v25, s52, v25")
    a("s_lshl_b32 s52, s20, 16\nv_lshrrev_b32 v26, 2, v28\nv_lshlrev_b32 v26, 13, v26\nv_and_b32 v28, 3, v28\nv_lshl_add_u32 v26, v28, 8, v26\nv_lshl_add_u32 v26, v27, 4, v26\nv_add_u32 v26, s52, v26")
    a("s_lshl_b32 s53, s16, 18\ns_lshr_b32 s52, s17, 1\ns_lshl_b32 s52, s52, 10\ns_add_u32 s53, s53, s52\ns_and_b32 s52, s17, 1\ns_lshl_b32 s52, s52, 7\ns_add_u32 s53, s53, s52\ns_add_u32 s53, s53, s61")
    a("s_lshl_b32 s52, s16, 4\ns_add_u32 s52, s52, s17\ns_lshl_b32 s52, s52, 14")
def lnq(a):
    a("s_load_dwordx2 s[4:5], s[0:1], 0"); ln_addr(a); a("s_waitcnt lgkmcnt(0)"); srd(a,24,4,5,1<<22)
    for i in range(4): a(f"buffer_load_dwordx4 v[{64+4*i}:{67+4*i}], v14, s[24:27], s52 offen offset:{128*i}")
def w1l(a):
    srd(a,28,52,53,3584*2048)
    a(f"s_lshl_b32 s46, s20, 8\ns_add_u32 s46, s46, s2\ns_cmp_ge_u32 s46, 896\ns_cselect_b32 s30, 0, s30")
    a(f"s_and_b32 s22, s2, 31\ns_lshr_b32 s23, s46, 5\ns_mul_i32 s46, s22, {32*7168}\ns_lshl_b32 s47, s23, 8\ns_add_u32 s46, s46, s47")
    a(f"v_mul_u32_u24 v114, {8*7168}, v113\nv_lshl_add_u32 v114, v112, 4, v114")
    for t in range(8): a(f"s_add_u32 s47, s46, {t*7168}\nbuffer_load_dwordx4 v[{80+4*t}:{83+4*t}], v114, s[28:31], s47 offen")
def w2l(a):
    srd(a,28,56,57,3584*2048)
    a("s_lshl_b32 s72, s20, 8\ns_add_u32 s72, s72, s2\ns_lshr_b32 s72, s72, 3")
    a("s_lshr_b32 s46, s72, 2\ns_lshl_b32 s46, s46, 18\ns_and_b32 s47, s72, 3\ns_lshl_b32 s47, s47, 12\ns_add_u32 s46, s46, s47\ns_lshl_b32 s47, s58, 8\ns_add_u32 s46, s46, s47")
    a("v_lshlrev_b32 v114, 16, v113\nv_lshl_add_u32 v114, v112, 2, v114")
    a("s_cmp_ge_u32 s72, 112\ns_cbranch_scc1 L_w2le")
    for t in range(8):
        a(f"s_add_u32 s47, s46, {(8*(t&3)+(t>>2))*2048}")
        for hq in range(4): a(f"buffer_load_dword a{144+16*(hq//2)+2*t+(hq&1)}, v114, s[28:31], s47 offen offset:{64*hq}")
    a("L_w2le:")
def w2s(a):
    a("s_cmp_ge_u32 s72, 112\ns_cbranch_scc1 L_w2se")
    for t in range(32): a(f"v_accvgpr_read_b32 v{16+t}, a{144+t}")
    a(f"s_mul_i32 s46, s58, {2*112*4096}\ns_lshl_b32 s47, s72, 12\ns_add_u32 s46, s46, s47\ns_add_u32 s46, s46, {WS_W2F}\ns_mov_b32 s72, 112")
    for hf in range(2):
        for x in range(4):
            o=48+16*hf+4*x; b=16+16*hf
            for p in range(4): a(f"v_perm_b32 v{o+p}, v{b+2*(2*p+1)+x//2}, v{b+2*(2*p)+x//2}, s{68+(x&1)}")
            a(f"buffer_store_dwordx4 v[{o}:{o+3}], v3, s[32:35], s46 offen offset:{x*1024} sc1")
        a(f"s_add_u32 s46, s46, {112*4096}")
    a("L_w2se:")
def front(a):
    a("s_load_dwordx4 s[4:7], s[0:1], 8\ns_load_dwordx4 s[8:11], s[0:1], 24\ns_load_dwordx2 s[12:13], s[0:1], 40\ns_load_dwordx2 s[14:15], s[0:1], 104\ns_load_dwordx4 s[52:55], s[0:1], 56\ns_load_dwordx2 s[56:57], s[0:1], 72")
    a("v_lshrrev_b32 v4, 6, v0\nv_and_b32 v2, 63, v0\nv_lshlrev_b32 v3, 4, v2\nv_readfirstlane_b32 s20, v4")
    a("s_and_b32 s58, s2, 7\ns_lshr_b32 s59, s2, 3\nv_and_b32 v124, 31, v0\nv_lshrrev_b32 v7, 5, v0")
    a("s_lshl_b32 s18, s59, 17\nv_lshlrev_b32 v9, 14, v7\nv_lshl_add_u32 v9, v124, 3, v9\nv_add_u32 v9, s18, v9\ns_lshl_b32 s19, s58, 8")
    a("v_subrev_u32 v4, 6144, v9\nv_and_b32 v4, 0x7fffffff, v4\nv_lshlrev_b32 v6, 5, v124\ns_lshl_b32 s36, s58, 10")
    a("s_waitcnt lgkmcnt(0)")
    srd(a,40,4,5,1<<22); srd(a,24,6,7,1<<22); srd(a,28,8,9,8192); srd(a,32,14,15,WS_SIZE)
    for r in range(3): a(f"v_add_u32 v5, {r*2048}, v4\nbuffer_load_dwordx2 v[{10+2*r}:{11+2*r}], v5, s[40:43], s19 offen")
    for r in range(8):
        if r%2==0: a(f"v_add_u32 v5, {r*2048}, v9")
        a(f"buffer_load_dwordx2 v[{16+2*r}:{17+2*r}], v5, s[40:43], s19 offen offset:{(r%2)*2048}")
        a(f"buffer_load_dwordx2 v[{32+2*r}:{33+2*r}], v5, s[24:27], s19 offen offset:{(r%2)*2048}")
    a("buffer_load_dwordx4 v[48:51], v6, s[28:31], s36 offen\nbuffer_load_dwordx4 v[52:55], v6, s[28:31], s36 offen offset:16")
    a(f"s_add_u32 s4, s14, {WS_NONCE}\ns_addc_u32 s5, s15, 0\ns_load_dword s64, s[4:5], 0")
    a("s_lshl_b32 s21, s58, 7\ns_lshl_b32 s18, s59, 2\ns_add_u32 s21, s21, s18\ns_lshl_b32 s18, s21, 1\ns_add_u32 s12, s12, s18\ns_addc_u32 s13, s13, 0\ns_load_dwordx2 s[44:45], s[12:13], 0")
    a("s_mov_b32 s68, 0x05040100\ns_mov_b32 s69, 0x07060302\nv_and_b32 v112, 15, v2\nv_lshrrev_b32 v113, 4, v2")
    RL=128
    a("s_cmp_lt_u32 s20, 2\ns_cbranch_scc1 L_w1l\ns_sub_u32 s48, s20, 2")
    srd(a,28,10,11,1<<22)
    a("s_lshl_b32 s46, s48, 1\ns_add_u32 s46, s46, s21\ns_lshl_b32 s46, s46, 12")
    for cc in range(2):
        for it in range(4):
            a(f"buffer_load_dwordx4 v[{RL+16*cc+4*it}:{RL+3+16*cc+4*it}], v3, s[28:31], s46 offen offset:{it*1024}")
            a(f"buffer_load_dword v{RL+32+4*cc+it}, v3, s[28:31], s46 offen offset:{it*1024+16}")
        a("s_add_u32 s46, s46, 4096")
    a("s_waitcnt vmcnt(16)\ns_branch L_kv")
    a("L_w1l:\ns_waitcnt vmcnt(0)")
    WA=64
    a("L_kv:"); stamp(a,1)
    KVL=65536
    a(f"v_mul_u32_u24 v8, 576, v124\nv_lshlrev_b32 v9, 4, v7\nv_sub_u32 v8, v8, v9\nv_add_u32 v8, {KVL+112}, v8")
    unpack(a,56,48,8)
    for c in range(4):
        for r in range(11):
            src=10+2*r+c//2
            a(f"v_lshlrev_b32 v{72+r}, 16, v{src}" if c%2==0 else f"v_and_b32 v{72+r}, 0xffff0000, v{src}")
        for r in range(8):
            src=32+2*r+c//2
            a(f"v_mul_f32 v{84+r}, v{56+4*c+3}, v{72+r}")
            a(f"v_lshlrev_b32 v{92}, 16, v{src}" if c%2==0 else f"v_and_b32 v{92}, 0xffff0000, v{src}")
            a(f"v_fmac_f32 v{84+r}, v{56+4*c+2}, v{73+r}\nv_fmac_f32 v{84+r}, v{56+4*c+1}, v{74+r}\nv_fmac_f32 v{84+r}, v{56+4*c}, v{75+r}")
            a(f"v_mul_f32 v{84+r}, v{84+r}, v92")
        for p in range(4): a(f"v_cvt_pk_bf16_f32 v{96+4*c+p}, v{84+7-2*p}, v{84+6-2*p}")
        a(f"ds_write_b128 v8, v[{96+4*c}:{99+4*c}] offset:{c*144}")
    a(f"s_mul_i32 s47, s20, {UR_STRIDE}\nv_mov_b32 v70, 0\nv_mov_b32 v71, 0\nv_lshlrev_b32 v7, 3, v2\nv_add_u32 v7, s47, v7\nds_write_b64 v7, v[70:71] offset:4096")
    a("s_waitcnt lgkmcnt(0)\ns_barrier")
    a(f"s_mul_i32 s64, s64, 0x9e3779b1\ns_add_u32 s64, s64, 0x7f4a7c15\ns_mov_b32 s65, {WS_FLG}")
    a("s_cmp_ge_u32 s20, 2\ns_cbranch_scc1 L_w1s")
    a(f"v_lshrrev_b32 v8, 3, v0\nv_mul_u32_u24 v8, 144, v8\nv_and_b32 v9, 7, v0\nv_lshl_add_u32 v8, v9, 4, v8\nv_add_u32 v8, {KVL}, v8\nv_lshlrev_b32 v9, 4, v0")
    a(f"s_sub_u32 s18, 31, s59\ns_lshl_b32 s18, s18, 17\ns_lshl_b32 s19, s58, 14\ns_add_u32 s18, s18, s19\ns_add_u32 s18, s18, {WS_UR}")
    for it in range(8): a(f"ds_read_b128 v[{16+4*it}:{19+4*it}], v8 offset:{it*16*144}")
    for it in range(8):
        a(f"s_waitcnt lgkmcnt({7-it})\nbuffer_store_dwordx4 v[{16+4*it}:{19+4*it}], v9, s[32:35], s18 offen offset:{(it&1)*2048} sc1")
        if it&1: a("s_add_u32 s18, s18, 4096")
    a("s_lshl_b32 s73, s58, 8\ns_lshl_b32 s72, s59, 2\ns_add_u32 s72, s72, s73")
    signal(a,0,"s72",1); stamp(a)
    wait(a,0,"s73",112); stamp(a)
    a("s_branch L_cv\nL_w1s:\ns_barrier")
    a(f"s_mul_i32 s48, s48, {2*HP_STRIDE}\ns_add_u32 s48, s48, {HP0}\nv_add_u32 v9, s48, v3\ns_waitcnt vmcnt(0)")
    for i in range(7): a(f"v_mov_b32 v{116+i}, 0")
    for cc in range(2):
        for it in range(4):
            b=RL+16*cc+4*it; o=56+4*it
            a(f"ds_write_b128 v9, v[{b}:{b+3}] offset:{cc*HP_STRIDE+32+it*1024}")
            a(f"v_alignbit_b32 v{o}, v{b+1}, v{b}, 16\nv_alignbit_b32 v{o+1}, v{b+2}, v{b+1}, 16\nv_alignbit_b32 v{o+2}, v{b+3}, v{b+2}, 16\nv_alignbit_b32 v{o+3}, v{RL+32+4*cc+it}, v{b+3}, 16")
            a(f"ds_write_b128 v9, v[{o}:{o+3}] offset:{cc*HP_STRIDE+HP_C1+32+it*1024}")
        h=cc*HP_STRIDE
        a(f"v_lshlrev_b32 v123, 16, v{RL+16*cc}\ns_mov_b64 exec, 1\nds_write_b128 v9, v[116:119] offset:{h}\nds_write_b128 v9, v[116:119] offset:{h+16}\nds_write_b128 v9, v[116:119] offset:{h+HP_C1}\nds_write_b128 v9, v[120:123] offset:{h+HP_C1+16}\ns_mov_b64 exec, -1\ns_waitcnt lgkmcnt(0)")
    a("s_lshl_b32 s47, s20, 8\ns_add_u32 s47, s47, s2\ns_cmp_ge_u32 s47, 540\ns_cbranch_scc1 L_wj")
    srd(a,28,54,55,7168)
    a(f"v_lshlrev_b32 v8, 2, v2\ns_lshl_b32 s47, s2, 8\nbuffer_load_dword v9, v8, s[28:31], s47 offen\nv_and_b32 v10, 3, v2\nv_lshlrev_b32 v10, 7, v10\nv_and_b32 v11, 60, v2\nv_add_u32 v10, v10, v11\ns_lshl_b32 s47, s2, 9\ns_add_u32 s47, s47, {WS_B1F}")
    a("s_waitcnt vmcnt(0)\nv_lshlrev_b32 v11, 16, v9\nv_and_b32 v12, 0xffff0000, v9\nbuffer_store_dword v11, v10, s[32:35], s47 offen sc1\nbuffer_store_dword v12, v10, s[32:35], s47 offen offset:64 sc1")
    a("L_wj:\ns_barrier")
    a("L_cv:")
    a(f"s_add_u32 s19, s20, s21\ns_lshl_b32 s19, s19, 7\ns_add_u32 s19, s19, {WS_UR}\ns_mul_i32 s18, s20, {UR_STRIDE}")
    a("v_lshrrev_b32 v4, 3, v2\nv_lshlrev_b32 v4, 17, v4\nv_and_b32 v5, 7, v2\nv_lshl_add_u32 v4, v5, 4, v4")
    for it in range(4): a(f"s_add_u32 m0, s18, {it*1024}\ns_add_u32 s22, s19, {it*(8<<17)}\nbuffer_load_dwordx4 v4, s[32:35], s22 offen sc1 lds")
    w1l(a); lnq(a)
    a(f"s_mul_i32 s47, s20, {UR_STRIDE}\ns_mul_i32 s48, s20, {HP_STRIDE}\ns_add_u32 s48, s48, {HP0}")
    a("s_lshr_b32 s49, s20, 1\ns_cmp_eq_u32 s49, 0\ns_cselect_b32 s49, s44, s45\ns_lshl_b32 s50, s49, 16\ns_and_b32 s49, s49, 0xffff0000\ns_bitcmp1_b32 s20, 0\ns_cselect_b32 s49, s49, s50")
    a("v_add_u32 v5, 1, v112\nv_lshrrev_b32 v5, 1, v5\nv_lshl_add_u32 v5, v113, 2, v5\nv_lshlrev_b32 v5, 2, v5")
    a(f"v_and_b32 v6, 1, v112\nv_xor_b32 v6, 1, v6\nv_mul_u32_u24 v6, {HP_C1}, v6\nv_add3_u32 v5, v5, v6, s48")
    for q in range(1,4): a(f"v_add_u32 v{5+q}, {1024*q}, v5")
    a(f"v_lshlrev_b32 v9, 5, v112\nv_sub_u32 v9, {2*2032-512*7}, v9\nv_lshl_add_u32 v9, v113, 4, v9\nv_add_u32 v9, s47, v9")
    for i in range(32): a(f"v_accvgpr_write_b32 a{i}, 0")
    a("s_waitcnt vmcnt(12)"); stamp(a,3)
    FA=[128,192]; FB=[160,224]
    def rd(rho,buf):
        L=[]
        for x in range(8):
            L.append(f"ds_read_b128 v[{FB[buf]+4*x}:{FB[buf]+4*x+3}], v9 offset:{512*(7-x)+64*rho}")
            o=(x%2)*128+16*rho
            L.append(f"ds_read2_b32 v[{FA[buf]+4*x}:{FA[buf]+4*x+1}], v{5+x//2} offset0:{o} offset1:{o+1}")
            L.append(f"ds_read2_b32 v[{FA[buf]+4*x+2}:{FA[buf]+4*x+3}], v{5+x//2} offset0:{o+2} offset1:{o+3}")
        return L
    for s in rd(0,0): a(s)
    a("s_mov_b32 s51, 4\nL_cvl:")
    for rho in range(2):
        buf=rho&1; a("s_waitcnt lgkmcnt(0)"); nxt=rd(rho+1,buf^1); n=0
        for aa in range(8):
            for b in range(8-aa):
                J=aa+b
                a(f"{MF} a[{4*J}:{4*J+3}], v[{FA[buf]+4*aa}:{FA[buf]+4*aa+3}], v[{FB[buf]+4*b}:{FB[buf]+4*b+3}], a[{4*J}:{4*J+3}]")
                if n<len(nxt): a(nxt[n]); n+=1
                elif rho==1 and n<len(nxt)+5: a(f"v_add_u32 v{5+n-len(nxt)}, 128, v{5+n-len(nxt)}"); n+=1
    a("s_sub_u32 s51, s51, 1\ns_cmp_lg_u32 s51, 0\ns_cbranch_scc1 L_cvl\ns_waitcnt lgkmcnt(0)")
    a(f"v_lshlrev_b32 v4, 5, v112\nv_lshl_add_u32 v4, v113, 3, v4\nv_add_u32 v5, s48, v4\nv_sub_u32 v4, {2*2044-512*7}, v4\nv_add_u32 v4, s47, v4")
    for J in range(8): a(f"ds_read_b64 v[{128+2*J}:{129+2*J}], v4 offset:{512*(7-J)}")
    for J in range(8):
        k0=128+2*J
        for r in range(4): a(f"v_accvgpr_read_b32 v{148+r}, a{4*J+r}")
        a(f"s_waitcnt lgkmcnt(7)\nv_and_b32 v144, 0xffff0000, v{k0+1}\nv_lshlrev_b32 v145, 16, v{k0+1}\nv_and_b32 v146, 0xffff0000, v{k0}\nv_lshlrev_b32 v147, 16, v{k0}")
        for r in range(4): a(f"v_fmac_f32 v{148+r}, s49, v{144+r}")
        a(f"v_cvt_pk_bf16_f32 v{152+2*J}, v148, v149\nv_cvt_pk_bf16_f32 v{153+2*J}, v150, v151\nds_write_b64 v5, v[{152+2*J}:{153+2*J}] offset:{512*J}")
    a(f"v_lshlrev_b32 v6, 2, v0\nv_add_u32 v6, {HP0}, v6\ns_waitcnt lgkmcnt(0)\ns_barrier")
    for it in range(4):
        for c in range(4): a(f"ds_read_b32 v{168+4*it+c}, v6 offset:{c*HP_STRIDE+it*1024}")
    a("v_lshrrev_b32 v7, 2, v0\nv_lshlrev_b32 v7, 14, v7\nv_and_b32 v8, 3, v0\nv_lshl_add_u32 v7, v8, 4, v7\ns_lshl_b32 s50, s21, 4")
    for it in range(4):
        b=168+4*it; o=184+4*it
        a(f"s_waitcnt lgkmcnt({12-4*it})\nv_perm_b32 v{o}, v{b+1}, v{b}, s68\nv_perm_b32 v{o+1}, v{b+3}, v{b+2}, s68\nv_perm_b32 v{o+2}, v{b+1}, v{b}, s69\nv_perm_b32 v{o+3}, v{b+3}, v{b+2}, s69")
        a(f"buffer_store_dwordx4 v[{o}:{o+3}], v7, s[32:35], s50 offen sc1\ns_add_u32 s50, s50, {64*16384}")
def w1s(a):
    a("s_lshl_b32 s46, s20, 8\ns_add_u32 s46, s46, s2\ns_cmp_ge_u32 s46, 896\ns_cbranch_scc1 L_we")
    a(f"s_mul_i32 s46, s22, {14*1024}\ns_add_u32 s46, s46, {WS_W1F}\ns_lshl_b32 s23, s23, 3")
    for x in range(8):
        o=144+4*x; b=80
        a(f"s_add_u32 s47, s23, {x}\ns_mul_i32 s49, s47, 4682\ns_lshr_b32 s49, s49, 16\ns_mul_i32 s49, s49, {32*14-14}\ns_add_u32 s47, s47, s49\ns_lshl_b32 s47, s47, 10\ns_add_u32 s47, s47, s46")
        for p in range(4): a(f"v_perm_b32 v{o+p}, v{b+4*(2*p+1)+x//2}, v{b+4*(2*p)+x//2}, s{68+(x&1)}")
        a(f"buffer_store_dwordx4 v[{o}:{o+3}], v3, s[32:35], s47 offen sc1")
    a("L_we:")
X=32
def stats(a, off):
    a(f"v_pk_add_f32 v[28:29], v[{X}:{X+1}], v[{X+2}:{X+3}]\nv_pk_mul_f32 v[30:31], v[{X}:{X+1}], v[{X}:{X+1}]")
    for e in range(2,32,2):
        if e>2: a(f"v_pk_add_f32 v[28:29], v[28:29], v[{X+e}:{X+e+1}]")
        a(f"v_pk_fma_f32 v[30:31], v[{X+e}:{X+e+1}], v[{X+e}:{X+e+1}], v[30:31]")
    a("v_add_f32 v28, v28, v29\nv_add_f32 v29, v30, v31")
    a("s_nop 1\nv_permlane32_swap_b32 v28, v29\ns_nop 1\nv_add_f32 v28, v28, v29\nv_mov_b32 v29, v28\ns_nop 1\nv_permlane16_swap_b32 v28, v29\ns_nop 1\nv_add_f32 v28, v28, v29\ns_nop 1")
    a("v_add_f32_dpp v28, v28, v28 row_ror:8 row_mask:0xf bank_mask:0xf")
    a(f"ds_write_b32 v25, v28 offset:{off}\ns_waitcnt lgkmcnt(0)\ns_barrier\nds_read_b128 v[132:135], v24 offset:{off}\nds_read_b128 v[136:139], v24 offset:{off+16}")
    a("s_mov_b32 s54, 0x3a800000\ns_mov_b32 s55, 0x3727c5ac\ns_waitcnt lgkmcnt(0)")
    a("v_add_f32 v132, v132, v133\nv_add_f32 v134, v134, v135\nv_add_f32 v136, v136, v137\nv_add_f32 v138, v138, v139\nv_add_f32 v132, v132, v134\nv_add_f32 v136, v136, v138")
    a("v_mul_f32 v132, s54, v132\nv_mul_f32 v136, s54, v136\nv_fma_f32 v136, -v132, v132, v136\nv_max_f32 v136, 0, v136\nv_add_f32 v136, s55, v136\nv_rsq_f32 v136, v136\ns_nop 0\nv_mul_f32 v132, -v132, v136\nv_mov_b32 v137, v136\nv_mov_b32 v133, v132")
def g1_pre(a):
    g1_setup(a)
    a("s_mov_b32 s44, 0\ns_and_b32 s21, s20, 1\ns_lshr_b32 s22, s20, 1")
    a(f"v_lshrrev_b32 v4, 4, v2\nv_lshlrev_b32 v4, 4, v4\ns_mul_i32 s23, s17, 896\ns_mul_i32 s24, s22, 448\ns_add_u32 s23, s23, s24\ns_add_u32 s23, s23, {WS_B1F}")
    for i in range(7): a(f"buffer_load_dwordx4 v[{104+4*i}:{107+4*i}], v4, s[32:35], s23 offen offset:{64*i}")
def g1_w(a):
    a(f"s_add_u32 s43, s43, {3*28672}\ns_cmp_eq_u32 s20, 0\ns_cbranch_scc1 L_gw\ns_sub_u32 s46, s20, 1\ns_mul_i32 s47, s46, 28672\ns_mul_i32 s48, s17, 458752\ns_add_u32 s47, s47, s48\ns_add_u32 s47, s47, {WS_W1F}\ns_mul_i32 s46, s46, {ST}")
    for c in range(7):
        a(f"s_add_u32 m0, s46, {16384+c*4096}\ns_add_u32 s48, s47, {c*4096}")
        for i in range(4): a(f"buffer_load_dwordx4 v3, s[32:35], s48 offen offset:{i*1024} lds")
    a("L_gw:")
def flag8(a,ph,n,cond):
    a(f"{cond}\ns_cbranch_scc1 {n}\ns_add_u32 s66, s70, {WS_FLG+ph*0x4000}\nv_mov_b32 v12, s64\nv_lshlrev_b32 v13, 10, v2\ns_mov_b64 exec, 0xff\nbuffer_store_dword v12, v13, s[32:35], s66 offen sc1\ns_mov_b64 exec, -1\n{n}:")
def main():
    a=Asm()
    a("s_cmp_ge_u32 s2, 256\ns_cbranch_scc1 L_end\ns_mov_b32 s76, 0"); stamp(a)
    tilemap(a,4,8); a("s_lshl_b32 s70, s16, 4\ns_add_u32 s70, s70, s17\ns_lshl_b32 s70, s70, 2\ns_and_b32 s77, s2, 7\ns_lshl_b32 s77, s77, 10\ns_lshl_b32 s79, s16, 8\ns_lshl_b32 s78, s17, 2\ns_add_u32 s78, s78, s79\ns_and_b32 s71, s78, 0xffe0")
    a(f"s_mov_b32 s60, 0\ns_mov_b32 s61, {WS_XN[0]}\ns_mov_b32 s62, {WS_UR}\ns_mov_b32 s63, {WS_H[0]}")
    front(a); stamp(a)
    signal(a,1,"s70","0xff"); stamp(a)
    w1s(a); w2l(a); unpack(a,X,64,16); stats(a,0)
    a("s_waitcnt vmcnt(16)"); wait(a,1,"s77",1008); stamp(a); flag8(a,9,"L_f9","s_cmp_lg_u32 s20, 0")
    for i in range(4):
        for hh in range(2): a(f"buffer_load_dwordx2 v[{80+4*i+2*hh}:{81+4*i+2*hh}], v15, s[32:35], s52 offen offset:{i*1024+hh*64} sc1")
    g1_pre(a)
    for i in range(64): a(f"v_accvgpr_write_b32 a{i}, 0")
    a("s_waitcnt vmcnt(7)")
    for p in range(16): a(f"v_accvgpr_write_b32 a{128+p}, v{80+p}")
    a("L_lnc:"); stamp(a)
    for p in range(16):
        a(f"v_lshlrev_b32 v28, 16, v{80+p}\nv_and_b32 v29, 0xffff0000, v{80+p}\nv_pk_fma_f32 v[30:31], v[{X+2*p}:{X+2*p+1}], v[136:137], v[132:133]\nv_pk_fma_f32 v[{X+2*p}:{X+2*p+1}], v[30:31], v[28:29], v[{X+2*p}:{X+2*p+1}]\nv_cvt_pk_bf16_f32 v{64+p}, v{X+2*p}, v{X+2*p+1}")
    a("s_add_u32 s52, s52, s62")
    unpack(a,X,64,16)
    a("s_cmp_eq_u32 s60, 0\ns_cbranch_scc1 L_x1k")
    for i in range(4): a(f"buffer_store_dwordx4 v[{64+4*i}:{67+4*i}], v14, s[32:35], s52 offen offset:{128*i} sc1")
    a("L_x1k:")
    stats(a,256)
    for i in range(4):
        for e in range(8*i,8*i+8,2): a(f"v_pk_fma_f32 v[{X+e}:{X+e+1}], v[{X+e}:{X+e+1}], v[136:137], v[132:133]")
        for p in range(4*i,4*i+4): a(f"v_cvt_pk_bf16_f32 v{80+p}, v{X+2*p}, v{X+2*p+1}")
        a(f"buffer_store_dwordx4 v[{80+4*i}:{83+4*i}], v26, s[32:35], s53 offen sc1\ns_add_u32 s53, s53, 16384")
    for p in range(16): a(f"v_accvgpr_write_b32 a{240+p}, v{64+p}")
    a("s_waitcnt vmcnt(4)")
    for i in range(7):
        for j in range(4):
            for r in (0,2): a(f"v_pk_mov_b32 v[{132+4*(4*i+j)+r}:{133+4*(4*i+j)+r}], v[{104+4*i+r}:{105+4*i+r}], v[{104+4*i+r}:{105+4*i+r}] op_sel:[0,1]")
    a("s_cmp_lg_u32 s60, 0\ns_cbranch_scc1 L_w1g"); wait(a,9,"s77",1008); a("L_w1g:")
    stamp(a); signal(a,2,"s78",1); stamp(a); g1_w(a); w2s(a)
    wait(a,2,"s79",48); stamp(a)
    g1_body(a,"g1",mega=lambda: a(f"s_or_b32 s66, s60, s20\ns_cmp_lg_u32 s66, 0\ns_cbranch_scc1 L_w2f\ns_add_u32 s66, s70, {WS_FLG+8*0x4000}\nv_mov_b32 v12, s64\nv_lshlrev_b32 v13, 10, v2\ns_mov_b64 exec, 0xff\nbuffer_store_dword v12, v13, s[32:35], s66 offen sc1\ns_mov_b64 exec, -1\nL_w2f:"))
    a("s_cmp_lg_u32 s60, 0\ns_cbranch_scc1 L_w2g"); wait(a,8,"s77",1008); a("L_w2g:")
    stamp(a); signal(a,3,"s78",1); stamp(a)
    g2_body(a,"g2",mega=lambda: (wait(a,3,"s71",16), stamp(a)))
    stamp(a)
    a("s_branch L_fin\nL_g2e:"); stamp(a)
    a(f"s_mov_b32 s60, 1\ns_mov_b32 s61, {WS_XN[1]}\ns_mov_b32 s63, {WS_H[1]}")
    g1_pre(a); ln_addr(a)
    for p in range(16): a(f"v_accvgpr_read_b32 v{80+p}, a{128+p}\nv_accvgpr_read_b32 v{64+p}, a{240+p}")
    unpack(a,X,64,16)
    signal(a,4,"s78",1); stamp(a)
    a(f"s_or_b32 s54, s2, s20\ns_cmp_lg_u32 s54, 0\ns_cbranch_scc1 L_nn\nv_mov_b32 v12, s64\nv_mov_b32 v13, 0\ns_mov_b32 s54, {WS_NONCE}\ns_mov_b64 exec, 1\nbuffer_store_dword v12, v13, s[32:35], s54 offen sc1\ns_mov_b64 exec, -1\nL_nn:")
    wait(a,4,"s79",48); stamp(a)
    a(f"s_add_u32 s54, s52, {WS_UR}\ns_add_u32 s55, s52, {WS_Y}\ns_add_u32 s65, s65, {3*0x4000}")
    for i in range(4):
        for k in range(2): a(f"buffer_load_dwordx4 v[{140+16*k+4*i}:{143+16*k+4*i}], v14, s[32:35], s{54+k} offen offset:{128*i} sc1")
    for i in range(64): a(f"v_accvgpr_write_b32 a{i}, 0")
    for p in range(16):
        if p%4==0: a(f"s_waitcnt vmcnt({6-p//2})")
        a(f"v_lshlrev_b32 v28, 16, v{140+p}\nv_and_b32 v29, 0xffff0000, v{140+p}\nv_lshlrev_b32 v30, 16, v{156+p}\nv_and_b32 v31, 0xffff0000, v{156+p}\nv_pk_add_f32 v[28:29], v[28:29], v[30:31]")
        a(f"v_pk_add_f32 v[28:29], v[28:29], v[{X+2*p}:{X+2*p+1}]\nv_cvt_pk_bf16_f32 v30, v28, v29\nv_lshlrev_b32 v{X+2*p}, 16, v30\nv_and_b32 v{X+2*p+1}, 0xffff0000, v30")
    stats(a,0)
    a("s_branch L_lnc\nL_fin:")
    if STAMP:
        a("s_waitcnt vmcnt(0)"); stamp(a)
        a(f"v_lshlrev_b32 v2, 2, v0\ns_lshl_b32 s74, s2, 10\ns_add_u32 s74, s74, {WS_DBG}\nv_writelane_b32 v1, s76, 63\nbuffer_store_dword v1, v2, s[32:35], s74 offen")
    a("L_end:\ns_endpgm")
    N="interleave_layers__ssm_conv_h3__dense_activation_squared_relu__prompt"
    hdr="".join(l for l in open(f"cdna_kernels/{N}.s.ref").readlines()[:15])
    out=sys.argv[1] if len(sys.argv)>1 else f"cdna_kernels/{N}.s"
    t=assemble_file([(N+"_kernel",256,256,LN_LDS+1024)],[(N+"_kernel",a.text(),kernel_desc(N+"_kernel",512,256))])
    if not os.environ.get("LIST"): t=t.replace(f"kernel={N}_kernel ","")
    open(out,"w").write(hdr+t)
main()
```

```python
from common import *
from k_conv import *
MF="v_mfma_f32_16x16x32_bf16"
G1MAP=eval(os.environ.get("G1MAP","(8,4)"))
LSC=os.environ.get("LSC","").replace("_"," ")
def tilemap(a, mtx, ntx):
    import math
    lg=lambda x:int(math.log2(x)); nxn=16//ntx
    a(f"s_and_b32 s18, s2, 7\ns_lshr_b32 s19, s2, 3\ns_lshr_b32 s16, s18, {lg(nxn)}\ns_lshl_b32 s16, s16, {lg(mtx)}\ns_lshr_b32 s17, s19, {lg(ntx)}\ns_add_u32 s16, s16, s17")
    a(f"s_and_b32 s17, s18, {nxn-1}\ns_lshl_b32 s17, s17, {lg(ntx)}\ns_and_b32 s19, s19, {ntx-1}\ns_add_u32 s17, s17, s19")
ST=45056
PT=int(os.environ.get("PT","0"))
def g1_setup(a):
    a("s_lshl_b32 s40, s20, 12\ns_mul_i32 s41, s20, 7168")
    a(f"s_lshl_b32 s42, s16, 18\ns_add_u32 s42, s42, s40\ns_add_u32 s42, s42, s61")
    a(f"s_mul_i32 s43, s17, 458752\ns_add_u32 s43, s43, s41\ns_add_u32 s43, s43, {WS_W1F}\ns_add_u32 s41, s41, 16384\ns_mov_b32 s44, 0")
def g1_issue_w():
    L=[f"s_add_u32 m0, s41, s44\ns_add_u32 s45, s43, 4096\nbuffer_load_dwordx4 v3, s[32:35], s43 offen lds"]
    for i in range(1,4): L.append(f"buffer_load_dwordx4 v3, s[32:35], s43 offen offset:{i*1024} lds")
    L.append(f"s_add_u32 m0, m0, 4096\ns_add_u32 s43, s43, 28672\nbuffer_load_dwordx4 v3, s[32:35], s45 offen lds")
    for i in range(1,3): L.append(f"buffer_load_dwordx4 v3, s[32:35], s45 offen offset:{i*1024} lds")
    return L
def g1_issue_x():
    L=[f"s_add_u32 m0, s40, s44\ns_add_u32 s44, s44, {ST}\nbuffer_load_dwordx4 v3, s[32:35], s42 offen lds{LSC}"]
    for i in range(1,4): L.append(f"buffer_load_dwordx4 v3, s[32:35], s42 offen offset:{i*1024} lds{LSC}")
    L[-1]+=f"\ns_add_u32 s42, s42, 16384\ns_cmp_eq_u32 s44, {3*ST}\ns_cselect_b32 s44, 0, s44"
    return L
def w2rel_loads(a, R, name):
    a("s_load_dwordx2 s[4:5], s[0:1], 72\ns_lshl_b32 s46, s2, 2\ns_add_u32 s46, s46, s20\ns_waitcnt lgkmcnt(0)")
    srd(a,28,4,5,3584*2048)
    a("s_and_b32 s47, s46, 7\ns_lshr_b32 s48, s46, 3\ns_lshr_b32 s49, s48, 2\ns_lshl_b32 s49, s49, 18\ns_and_b32 s50, s48, 3\ns_lshl_b32 s50, s50, 12\ns_add_u32 s49, s49, s50\ns_lshl_b32 s50, s47, 8\ns_add_u32 s49, s49, s50")
    a("v_lshrrev_b32 v10, 4, v2\nv_lshlrev_b32 v10, 16, v10\nv_and_b32 v11, 15, v2\nv_lshl_add_u32 v10, v11, 3, v10")
    for hf in range(2):
        for t in range(8):
            a(f"s_add_u32 s50, s49, {(8*(t&3)+(t>>2))*2048}\nbuffer_load_dwordx2 v[{R+16*hf+2*t}:{R+1+16*hf+2*t}], v10, s[28:31], s50 offen offset:{128*hf}")
    a(f"s_mul_i32 s49, s47, {2*112*4096}\ns_lshl_b32 s50, s48, 12\ns_add_u32 s49, s49, s50\ns_add_u32 s49, s49, {WS_W2F}")
    a("s_mov_b32 s47, 0x05040100\ns_mov_b32 s48, 0x07060302")
def w2rel_stores(a, R, O):
    for hf in range(2):
        for x in range(4):
            o=O+16*hf+4*x
            for p in range(4): a(f"v_perm_b32 v{o+p}, v{R+16*hf+2*(2*p+1)+x//2}, v{R+16*hf+2*(2*p)+x//2}, s{47+(x&1)}")
            a(f"buffer_store_dwordx4 v[{o}:{o+3}], v3, s[32:35], s49 offen offset:{x*1024}{SC}")
        a(f"s_add_u32 s49, s49, {112*4096}")
def g1_body(a, name, mega=False, pre=None):
    P=16; Q=60; BI=104; R=132; O=164
    if mega:
        for s in g1_issue_x()+g1_issue_x()+g1_issue_x(): a(s)
    else:
      a("s_and_b32 s21, s20, 1\ns_lshr_b32 s22, s20, 1")
      a(f"v_lshrrev_b32 v4, 4, v2\nv_lshlrev_b32 v4, 4, v4\ns_mul_i32 s23, s17, 896\ns_mul_i32 s24, s22, 448\ns_add_u32 s23, s23, s24\ns_add_u32 s23, s23, {WS_B1F}")
      for i in range(7): a(f"buffer_load_dwordx4 v[{BI+4*i}:{BI+4*i+3}], v4, s[32:35], s23 offen offset:{64*i}")
      for s in g1_issue_w()+g1_issue_x()+g1_issue_w()+g1_issue_x(): a(s)
    a("s_lshl_b32 s24, s21, 12\ns_mul_i32 s25, s22, 7168\ns_add_u32 s25, s25, 16384")
    a("v_add_u32 v5, s24, v3\nv_add_u32 v8, s25, v3\nv_mov_b32 v6, v5\nv_mov_b32 v9, v8\ns_mov_b32 s36, 0")
    a(f"s_mul_i32 s26, s16, 917504\ns_mul_i32 s27, s17, {7*8192}\ns_add_u32 s26, s26, s27\ns_lshl_b32 s27, s21, 12\ns_add_u32 s26, s26, s27\ns_add_u32 s26, s26, s63")
    def reads(kbl,R):
        w=[f"ds_read_b128 v[{R+16+4*i}:{R+19+4*i}], v9 offset:{kbl*14336+i*1024}" for i in range(7)]
        x=[f"ds_read_b128 v[{R+4*j}:{R+4*j+3}], v6 offset:{kbl*8192+j*1024}" for j in range(4)]
        return [w[0]]+x+w[1:]
    def mfmas(R, extra):
        c=0
        for i in range(7):
            for j in range(4):
                d=132+4*(4*i+j)
                a(f"{MF} v[{d}:{d+3}], v[{R+16+4*i}:{R+19+4*i}], v[{R+4*j}:{R+4*j+3}], v[{d}:{d+3}]")
                if c in extra: a(extra[c])
                c+=1
    if not mega: a("s_waitcnt vmcnt(22)")
    for i in range(0 if mega else 7):
        for j in range(4):
            for r in range(4): a(f"v_accvgpr_write_b32 a{4*(4*i+j)+r}, v{BI+4*i+r}")
    pre(); a("s_barrier"); stamp(a,1)
    for s in reads(0,P): a(s)
    for s in ([] if mega else g1_issue_w()+g1_issue_x()): a(s)
    nxt=[f"s_add_u32 s36, s36, {ST}\ns_cmp_eq_u32 s36, {3*ST}\ns_cselect_b32 s36, 0, s36","v_add_u32 v6, s36, v5","v_add_u32 v9, s36, v8"]
    def step(vm, dma, last=False, loop=None):
        a("s_waitcnt lgkmcnt(0)")
        ex=dict(enumerate(reads(1,Q)+([] if last else nxt)))
        d=g1_issue_w()+g1_issue_x() if dma else []
        if not last: ex[17]=f"s_waitcnt vmcnt({vm}) lgkmcnt(0)\ns_barrier"
        for k in range(min(4,len(d))): ex[19+2*k]=d[k]
        mfmas(P, ex)
        if last: a("s_waitcnt lgkmcnt(0)")
        ex=dict(enumerate([] if last else reads(0,P)))
        for k in range(4,len(d)): ex[12+2*(k-4)]=d[k]
        if PT and (dma or vm==12): ex[11]="buffer_store_dwordx4 v[104:107], v3, s[32:35], s38 offen sc1\ns_add_u32 s38, s38, 1024"
        if loop: ex[26]="s_sub_u32 s37, s37, 1\ns_cmp_lg_u32 s37, 0"
        mfmas(Q, ex)
        if loop: a(f"s_cbranch_scc1 {loop}")
    a(f"s_lshl_b32 s27, s21, 12\ns_sub_u32 s38, s26, s27\ns_mul_i32 s27, s20, 14336\ns_add_u32 s38, s38, s27\ns_mov_b32 s37, 13\nL_cl_{name}:"); step(11+PT,True,loop=f"L_cl_{name}")
    mega(); step(11+PT,False); step(0,False)
    a("s_waitcnt lgkmcnt(0)"); stamp(a,3)
    def act(d, T):
        U=132+d
        return [f"v_max_f32 v{U+r}, 0, v{U+r}" for r in range(4)]+[f"v_pk_mul_f32 v[{U+r}:{U+r+1}], v[{U+r}:{U+r+1}], v[{U+r}:{U+r+1}]" for r in (0,2)]+[f"v_cvt_pk_bf16_f32 v{T+r//2}, v{U+r}, v{U+r+1}" for r in (0,2)]
    mf=lambda R,i,j:f"{MF} v[{132+16*i+4*j}:{135+16*i+4*j}], v[{R+16+4*i}:{R+19+4*i}], v[{R+4*j}:{R+4*j+3}], v[{132+16*i+4*j}:{135+16*i+4*j}]"
    rq=reads(1,Q); NP=3
    for c in range(4*NP):
        a(mf(P,c//4,c%4))
        if c<len(rq): a(rq[c])
    a(f"s_cmp_eq_u32 s22, 1\ns_cbranch_scc1 L_ep1_{name}")
    for wn in range(2):
        if wn==1: a(f"s_branch L_epd_{name}\nL_ep1_{name}:")
        groups=[(0,[0,1]),(1,[2,3]),(2,[4,5]),(3,[6])] if wn==0 else [(3,[0]),(4,[1,2]),(5,[3,4]),(6,[5,6])]
        M=[mf(P,NP,j) for j in range(4)]; M[3]+="\ns_waitcnt lgkmcnt(0)"; done={}
        for i in range(7):
            if i>NP: M+=[mf(P,i,j) for j in range(4)]
            M+=[mf(Q,i,j) for j in range(4)]; done[i]=len(M)
        V=[]; n=0
        for u,ii in groups:
            for j in range(4):
                T=104+4*(n%7); n+=1; L=[]
                for q,i in enumerate(ii): L+=act(4*(4*i+j), T+2*q)
                L.append(f"s_add_u32 s27, s26, {u*8192}\n"+(f"buffer_store_dwordx4 v[{T}:{T+3}], v3, s[32:35], s27 offen offset:{j*1024}{SC}" if len(ii)==2 else f"buffer_store_dwordx2 v[{T}:{T+1}], v3, s[32:35], s27 offen offset:{j*1024+8*wn}{SC}"))
                V+=[(done[ii[-1]]+3,x) for x in L]
        for c,m in enumerate(M):
            a(m)
            for _ in range(3):
                if V and V[0][0]<=c: a(V.pop(0)[1])
        for _,x in V: a(x)
    a(f"L_epd_{name}:")
def gen_g1(name):
    a=Asm(); a(f"B_{name}:")
    a(f"s_cmp_ge_u32 s2, 256\ns_cbranch_scc1 L_end_{name}")
    stamp(a,0)
    a("s_load_dwordx2 s[14:15], s[0:1], 104")
    a("v_lshrrev_b32 v1, 6, v0\nv_and_b32 v2, 63, v0\nv_lshlrev_b32 v3, 4, v2\nv_readfirstlane_b32 s20, v1")
    tilemap(a,*G1MAP)
    g1_setup(a)
    a("s_waitcnt lgkmcnt(0)")
    srd(a,32,14,15,WS_SIZE)
    g1_body(a,name)
    stamp(a,4); stamp_out(a,name,5)
    a(f"L_end_{name}:\ns_endpgm")
    return a.text(), (196+112,196,256,256,3*ST)

WS_XCH=0x6000000
def g2_body(a, name, mega):
    a("s_load_dwordx4 s[4:7], s[0:1], 80\ns_load_dwordx2 s[14:15], s[0:1], 104")
    a("s_lshr_b32 s46, s17, 3\ns_and_b32 s47, s20, 1\ns_and_b32 s48, s17, 7\ns_lshl_b32 s48, s48, 1\ns_lshr_b32 s23, s20, 1\ns_add_u32 s48, s48, s23\ns_mul_i32 s49, s46, 56\ns_lshl_b32 s44, s20, 12")
    a(f"s_mul_i32 s21, s16, 917504\ns_lshl_b32 s22, s49, 13\ns_add_u32 s21, s21, s22\ns_add_u32 s21, s21, s63\ns_add_u32 s21, s21, s44")
    a(f"s_mul_i32 s22, s48, 458752\ns_lshl_b32 s49, s49, 1\ns_add_u32 s49, s49, s47\ns_lshl_b32 s49, s49, 11\ns_add_u32 s22, s22, s49\ns_add_u32 s22, s22, {WS_W2F}")
    a("s_waitcnt lgkmcnt(0)")
    srd(a,28,4,5,2048)
    srd(a,24,6,7,1<<22)
    a("v_and_b32 v5, 15, v2\nv_lshlrev_b32 v5, 11, v5\nv_lshrrev_b32 v6, 4, v2\nv_lshlrev_b32 v6, 4, v6\nv_add_u32 v5, v5, v6\nv_add_u32 v4, 4096, v3\nv_add_u32 v7, 8192, v3")
    a("s_lshl_b32 s36, s16, 18\ns_lshl_b32 s37, s46, 17\ns_add_u32 s36, s36, s37\ns_lshl_b32 s37, s48, 1\ns_add_u32 s37, s37, s47\ns_lshl_b32 s37, s37, 6\ns_add_u32 s36, s36, s37\ns_add_u32 s38, s36, s62")
    a(f"s_mul_i32 s49, s46, {(WS_Y-WS_UR-(1<<17))&0xffffffff:#x}\ns_cmp_eq_u32 s60, 0\ns_cselect_b32 s49, s49, 0\ns_cselect_b32 s41, 0x40000000, 0\ns_add_u32 s38, s38, s49\nv_or_b32 v32, s41, v5")
    a(f"s_lshl_b32 s50, s17, 2\ns_add_u32 s50, s50, s20\ns_lshl_b32 s50, s50, 13\ns_xor_b32 s51, s50, {32<<13}\ns_mul_i32 s49, s16, 917504\ns_add_u32 s49, s49, {WS_H[0]}\ns_add_u32 s50, s50, s49\ns_add_u32 s51, s51, s49")
    P=36; Q=68; W=104; NS=int(os.environ.get("NS","3"))
    def wld(s):
        R=W+16*(s%8); L=[f"buffer_load_dwordx4 v[{R+4*i}:{R+4*i+3}], v{3+i//2}, s[32:35], s22 offen offset:{(i&1)*1024}" for i in range(4)]
        L[-1]+="\ns_add_u32 s22, s22, 8192"; return L
    def hld(s):
        L=[f"buffer_load_dwordx4 v3, s[32:35], s21 offen offset:{i*1024} lds" for i in range(4)]
        L[0]=f"s_add_u32 m0, s44, {(s%8)*16384}\ns_nop 0\n"+L[0]; L[-1]+="\ns_add_u32 s21, s21, 16384"; return L
    def reads(s,kbl,R):
        L=[f"ds_read_b128 v[{R+4*j}:{R+4*j+3}], v{102+(s%8)//4} offset:{(s%4)*16384+kbl*8192+j*1024}" for j in range(8)]
        return [L[2*i]+"\n"+L[2*i+1] for i in range(4)]
    BP=int(os.environ.get("BP","13"))
    def mfmas(R, Wr, ex):
        for c in range(16):
            a(f"{MF} a[{4*c}:{4*c+3}], v[{Wr+4*(c&1)}:{Wr+4*(c&1)+3}], v[{R+4*(c//2)}:{R+4*(c//2)+3}], a[{4*c}:{4*c+3}]")
            if c in ex: a(ex[c])
    def step(s, vm, d, last=False, loop=None):
        a("s_waitcnt lgkmcnt(0)")
        ex=dict(enumerate(reads(s,1,Q))); d=list(d)
        for c in range(5,BP,2):
            if len(d)>4: ex[c]=d.pop(0)
        if not last: ex[BP]=f"s_waitcnt vmcnt({vm})\ns_barrier"
        mfmas(P, W+16*(s%8), ex)
        a("s_waitcnt lgkmcnt(0)")
        ex=dict(enumerate([] if last else reads(s+1,0,P)))
        for c in range(5,15,2):
            if d: ex[c]=d.pop(0)
        if loop: ex[15]="s_sub_u32 s39, s39, 1\ns_cmp_lg_u32 s39, 0"
        mfmas(Q, W+16*(s%8)+8, ex)
        if loop: a(f"s_cbranch_scc1 {loop}")
    a("v_mov_b32 v102, v3\nv_add_u32 v103, 0x10000, v3")
    for s in range(NS):
        for x in wld(s): a(x)
    mega()
    for s in range(NS):
        for x in hld(s): a(x)
    assert NS==3
    a(f"s_waitcnt vmcnt(4)\ns_barrier")
    for x in reads(0,0,P): a(x)
    NL=(28-NS)//8
    a(f"s_mov_b32 s39, {NL}\nL_cl_{name}:")
    for s in range(8): step(s,8*NS-12,wld(s+NS)+hld(s+NS),loop=f"L_cl_{name}" if s==7 else None)
    ex=[f"s_add_u32 s49, s38, {jj*32768}\nbuffer_load_dwordx4 v[{16+4*jj}:{19+4*jj}], v32, s[32:35], s49 offen sc1" for jj in range(4)]
    ex[0]+="\nbuffer_load_dwordx4 v[8:11], v6, s[28:31], s37 offen"
    for s in range(8*NL,28):
        if s+NS<28: step(s,8*NS-12,wld(s+NS)+hld(s+NS))
        else: step(s,max(0,8*(26-s))+(5 if s+NS>28 else 0),ex if s+NS==28 else [],last=s==27)
    OWN=36; EX=104; RD=152
    for t in range(6): a(f"v_mov_b32 v{EX+4*t+3}, s64")
    a("s_nop 4")
    a("s_nop 7"); stamp(a,3)
    a(f"s_cmp_lg_u32 s60, 0\ns_cbranch_scc1 L_l1_{name}\ns_sub_u32 s49, s46, 1\ns_waitcnt vmcnt(0)")
    for r in range(4): a(f"v_and_b32 v{8+r}, s49, v{8+r}\nv_lshlrev_b32 v{16+r}, 16, v{8+r}\nv_and_b32 v{20+r}, 0xffff0000, v{8+r}")
    for tb in range(8):
        T=36+8*tb
        for e in range(8): a(f"v_accvgpr_read_b32 v{T+e}, a{8*tb+e}")
        for e in range(0,8,2): a(f"v_pk_add_f32 v[{T+e}:{T+e+1}], v[{T+e}:{T+e+1}], v[{16+e}:{17+e}]")
        for r in range(4): a(f"v_cvt_pk_bf16_f32 v{T+r}, v{T+r}, v{T+4+r}")
        a(f"buffer_store_dwordx4 v[{T}:{T+3}], v5, s[32:35], s38 offen sc1\ns_add_u32 s38, s38, 32768")
    a(f"s_branch L_g2e\nL_l1_{name}:\ns_cmp_eq_u32 s46, 1\ns_cbranch_scc1 L_k1_{name}")
    for k in range(2):
        if k==1: a(f"s_branch L_kd_{name}\nL_k1_{name}:")
        for t in range(6):
            for u in range(6 if t<5 else 2): a(f"v_accvgpr_read_b32 v{128+u}, a{32*(1-k)+6*t+u}")
            for u in range(3 if t<5 else 1): a(f"v_cvt_pk_bf16_f32 v{EX+4*t+u}, v{128+2*u}, v{129+2*u}")
            a(f"buffer_store_dwordx4 v[{EX+4*t}:{EX+4*t+3}], v{[3,4,7][t//4]}, s[32:35], s50 offen offset:{(t%4)*1024} sc1")
        for t in range(32): a(f"v_accvgpr_read_b32 v{OWN+t}, a{32*k+t}")
    a(f"L_kd_{name}:\ns_waitcnt vmcnt(6)\ns_mov_b32 s39, 0x40000")
    for r in range(4):
        a(f"v_lshlrev_b32 v33, 16, v{8+r}\nv_and_b32 v34, 0xffff0000, v{8+r}")
        for jj in range(4): a(f"v_add_f32 v{OWN+8*jj+r}, v{OWN+8*jj+r}, v33\nv_add_f32 v{OWN+8*jj+4+r}, v{OWN+8*jj+4+r}, v34")
    a(("" if os.environ.get("ND") else "s_waitcnt vmcnt(0)\n")+f"L_px_{name}:")
    for t in range(6): a(f"buffer_load_dwordx4 v[{RD+4*t}:{RD+4*t+3}], v{[3,4,7][t//4]}, s[32:35], s51 offen offset:{(t%4)*1024} sc1")
    a(f"s_waitcnt vmcnt(0)\nv_mov_b32 v33, 0")
    for t in range(0,6,2): a(f"v_xor_b32 v34, s64, v{RD+4*t+3}\nv_xor_b32 v35, s64, v{RD+4*t+7}\nv_or3_b32 v33, v33, v34, v35")
    a(f"v_cmp_ne_u32 vcc, 0, v33\ns_cmp_eq_u64 vcc, 0\ns_cbranch_scc1 L_pd_{name}\ns_sub_u32 s39, s39, 1\ns_cmp_lg_u32 s39, 0\ns_cbranch_scc1 L_px_{name}\nL_pd_{name}:")
    stamp(a,3)
    for jj in range(4):
        for p in range(4*jj,4*jj+4):
            r=RD+4*(p//3)+p%3; a(f"v_lshlrev_b32 v32, 16, v{r}\nv_and_b32 v33, 0xffff0000, v{r}\nv_pk_add_f32 v[{OWN+2*p}:{OWN+2*p+1}], v[{OWN+2*p}:{OWN+2*p+1}], v[32:33]")
        for r in range(4):
            e=OWN+8*jj+r; x=16+4*jj+r
            a(f"v_cvt_pk_bf16_f32 v35, v{e}, v{e+4}\nv_lshlrev_b32 v33, 16, v{x}\nv_and_b32 v34, 0xffff0000, v{x}\nv_lshlrev_b32 v{e}, 16, v35\nv_and_b32 v{e+4}, 0xffff0000, v35")
            a(f"v_add_f32 v33, v33, v{e}\nv_add_f32 v34, v34, v{e+4}\nv_cvt_pk_bf16_f32 v{x}, v33, v34")
        a(f"buffer_store_dwordx4 v[{16+4*jj}:{19+4*jj}], v5, s[24:27], s36 offen sc1\ns_add_u32 s36, s36, 32768")
```

```python
import sys
from common import *
from k_conv import *
from k_gemm import *
WS_FLG=0x4D00000; WS_NONCE=0x4D80000
LN_LDS=3*ST
W1B=int(os.environ.get("W1B","2"))
import k_gemm
def stamp(a,i=0):
    if STAMP: a("s_memrealtime s[74:75]\ns_waitcnt lgkmcnt(0)\ns_mov_b32 m0, s76\ns_add_u32 s76, s76, 1\nv_writelane_b32 v1, s74, m0")
k_gemm.stamp=stamp
def signal(a, ph, off, ex):
    a(f"s_add_u32 s66, {off}, s65\ns_add_u32 s66, s66, {ph*0x4000}\nv_mov_b32 v12, s64\nv_lshlrev_b32 v13, 10, v2")
    a("s_waitcnt vmcnt(0)\ns_barrier")
    n=f"sg{len(a.l)}"
    a(f"s_cmp_lg_u32 s20, 0\ns_cbranch_scc1 L_{n}\ns_mov_b64 exec, {ex}\nbuffer_store_dword v12, v13, s[32:35], s66 offen sc1\ns_mov_b64 exec, -1\nL_{n}:")
def wait(a, ph, idr, msk):
    n=f"wt{len(a.l)}"
    a(f"s_cmp_lg_u32 s20, 0\ns_cbranch_scc1 L_{n}d")
    a(f"s_add_u32 s66, {idr}, s65\ns_add_u32 s66, s66, {ph*0x4000}\nv_and_b32 v13, {msk}, v3")
    a(f"s_mov_b32 s67, 0x40000\nL_{n}:")
    a("buffer_load_dwordx4 v[8:11], v13, s[32:35], s66 offen sc1\ns_waitcnt vmcnt(0)\nv_xor_b32 v8, s64, v8\nv_xor_b32 v9, s64, v9\nv_xor_b32 v10, s64, v10\nv_xor_b32 v11, s64, v11\nv_or3_b32 v8, v8, v9, v10\nv_or_b32 v12, v8, v11\nv_cmp_ne_u32 vcc, 0, v12")
    a(f"s_cmp_eq_u64 vcc, 0\ns_cbranch_scc1 L_{n}d\ns_sub_u32 s67, s67, 1\ns_cmp_lg_u32 s67, 0\ns_cbranch_scc1 L_{n}\nL_{n}d:\ns_barrier")
def unpack(a,dst,src,n):
    for p in range(n): a(f"v_lshlrev_b32 v{dst+2*p}, 16, v{src+p}\nv_and_b32 v{dst+2*p+1}, 0xffff0000, v{src+p}")

def ln_addr(a):
    a("v_and_b32 v27, 7, v2\nv_lshrrev_b32 v28, 3, v2\ns_lshl_b32 s52, s20, 9\nv_lshlrev_b32 v14, 11, v27\nv_lshl_add_u32 v14, v28, 4, v14\nv_add_u32 v14, s52, v14")
    a("s_lshl_b32 s52, s20, 12\nv_lshlrev_b32 v15, 7, v28\nv_lshl_add_u32 v15, v27, 3, v15\nv_add_u32 v15, s52, v15")
    a(f"s_lshl_b32 s52, s20, 2\nv_lshlrev_b32 v24, 5, v27\nv_add_u32 v24, {LN_LDS}, v24\nv_lshrrev_b32 v25, 5, v2\nv_lshl_add_u32 v25, v25, 4, v24\nv_add_u32 v25, s52, v25")
    a("s_lshl_b32 s52, s20, 16\nv_lshrrev_b32 v26, 2, v28\nv_lshlrev_b32 v26, 13, v26\nv_and_b32 v28, 3, v28\nv_lshl_add_u32 v26, v28, 8, v26\nv_lshl_add_u32 v26, v27, 4, v26\nv_add_u32 v26, s52, v26")
    a("s_lshl_b32 s53, s16, 18\ns_lshr_b32 s52, s17, 1\ns_lshl_b32 s52, s52, 10\ns_add_u32 s53, s53, s52\ns_and_b32 s52, s17, 1\ns_lshl_b32 s52, s52, 7\ns_add_u32 s53, s53, s52\ns_add_u32 s53, s53, s61")
    a("s_lshl_b32 s52, s16, 4\ns_add_u32 s52, s52, s17\ns_lshl_b32 s52, s52, 14")
def lnq(a):
    a("s_load_dwordx2 s[4:5], s[0:1], 0"); ln_addr(a); a("s_waitcnt lgkmcnt(0)"); srd(a,24,4,5,1<<22)
    for i in range(4): a(f"buffer_load_dwordx4 v[{64+4*i}:{67+4*i}], v14, s[24:27], s52 offen offset:{128*i}")
def w1l(a):
    srd(a,28,52,53,3584*2048)
    a(f"s_lshl_b32 s46, s20, 8\ns_add_u32 s46, s46, s2\ns_cmp_ge_u32 s46, 896\ns_cselect_b32 s30, 0, s30")
    a(f"s_and_b32 s22, s2, 31\ns_lshr_b32 s23, s46, 5\ns_mul_i32 s46, s22, {32*7168}\ns_lshl_b32 s47, s23, 8\ns_add_u32 s46, s46, s47")
    a(f"v_mul_u32_u24 v114, {8*7168}, v113\nv_lshl_add_u32 v114, v112, 4, v114")
    for t in range(8): a(f"s_add_u32 s47, s46, {t*7168}\nbuffer_load_dwordx4 v[{80+4*t}:{83+4*t}], v114, s[28:31], s47 offen")
def w2l(a,n):
    srd(a,28,56,57,3584*2048)
    a("s_lshl_b32 s72, s20, 8\ns_add_u32 s72, s72, s2\ns_lshr_b32 s72, s72, 3")
    a("s_lshr_b32 s46, s72, 2\ns_lshl_b32 s46, s46, 18\ns_and_b32 s47, s72, 3\ns_lshl_b32 s47, s47, 12\ns_add_u32 s46, s46, s47\ns_lshl_b32 s47, s58, 8\ns_add_u32 s46, s46, s47")
    a("v_lshlrev_b32 v114, 16, v113\nv_lshl_add_u32 v114, v112, 2, v114")
    a(f"s_cmp_ge_u32 s72, 112\ns_cbranch_scc1 {n}")
    for t in range(8):
        a(f"s_add_u32 s47, s46, {(8*(t&3)+(t>>2))*2048}")
        for hq in range(4): a(f"buffer_load_dword a{144+16*(hq//2)+2*t+(hq&1)}, v114, s[28:31], s47 offen offset:{64*hq}")
def w2s(a):
    a("s_cmp_ge_u32 s72, 112\ns_cbranch_scc1 L_w2se")
    for t in range(32): a(f"v_accvgpr_read_b32 v{16+t}, a{144+t}")
    a(f"s_mul_i32 s46, s58, {2*112*4096}\ns_lshl_b32 s47, s72, 12\ns_add_u32 s46, s46, s47\ns_add_u32 s46, s46, {WS_W2F}\ns_mov_b32 s72, 112")
    for hf in range(2):
        for x in range(4):
            o=48+16*hf+4*x; b=16+16*hf
            for p in range(4): a(f"v_perm_b32 v{o+p}, v{b+2*(2*p+1)+x//2}, v{b+2*(2*p)+x//2}, s{68+(x&1)}")
            a(f"buffer_store_dwordx4 v[{o}:{o+3}], v3, s[32:35], s46 offen offset:{x*1024} sc1")
        a(f"s_add_u32 s46, s46, {112*4096}")
    a("s_waitcnt vmcnt(12)\ns_branch L_w2sf\nL_w2se:\ns_waitcnt vmcnt(4)\nL_w2sf:")
def front(a):
    a("s_load_dwordx4 s[4:7], s[0:1], 8\ns_load_dwordx4 s[8:11], s[0:1], 24\ns_load_dwordx2 s[12:13], s[0:1], 40\ns_load_dwordx2 s[14:15], s[0:1], 104\ns_load_dwordx4 s[52:55], s[0:1], 56\ns_load_dwordx2 s[56:57], s[0:1], 72")
    a("v_lshrrev_b32 v4, 6, v0\nv_and_b32 v2, 63, v0\nv_lshlrev_b32 v3, 4, v2\nv_readfirstlane_b32 s20, v4")
    a("s_and_b32 s58, s2, 7\ns_lshr_b32 s59, s2, 3\nv_and_b32 v124, 31, v0\nv_lshrrev_b32 v7, 5, v0")
    a("s_lshl_b32 s18, s59, 17\nv_lshlrev_b32 v9, 14, v7\nv_lshl_add_u32 v9, v124, 3, v9\nv_add_u32 v9, s18, v9\ns_lshl_b32 s19, s58, 8")
    a("v_subrev_u32 v4, 6144, v9\nv_and_b32 v4, 0x7fffffff, v4\nv_lshlrev_b32 v6, 5, v124\ns_lshl_b32 s36, s58, 10")
    a("s_waitcnt lgkmcnt(0)")
    srd(a,40,4,5,1<<22); srd(a,24,6,7,1<<22); srd(a,28,8,9,8192); srd(a,32,14,15,WS_SIZE)
    for r in range(3): a(f"v_add_u32 v5, {r*2048}, v4\nbuffer_load_dwordx2 v[{10+2*r}:{11+2*r}], v5, s[40:43], s19 offen")
    for r in range(8):
        if r%2==0: a(f"v_add_u32 v5, {r*2048}, v9")
        a(f"buffer_load_dwordx2 v[{16+2*r}:{17+2*r}], v5, s[40:43], s19 offen offset:{(r%2)*2048}")
        a(f"buffer_load_dwordx2 v[{32+2*r}:{33+2*r}], v5, s[24:27], s19 offen offset:{(r%2)*2048}")
    a("buffer_load_dwordx4 v[48:51], v6, s[28:31], s36 offen\nbuffer_load_dwordx4 v[52:55], v6, s[28:31], s36 offen offset:16")
    a(f"s_add_u32 s4, s14, {WS_NONCE}\ns_addc_u32 s5, s15, 0\ns_load_dword s64, s[4:5], 0")
    a("s_lshl_b32 s21, s58, 7\ns_lshl_b32 s18, s59, 2\ns_add_u32 s21, s21, s18\ns_lshl_b32 s18, s21, 1\ns_add_u32 s12, s12, s18\ns_addc_u32 s13, s13, 0\ns_load_dwordx2 s[44:45], s[12:13], 0")
    a("s_mov_b32 s68, 0x05040100\ns_mov_b32 s69, 0x07060302\nv_and_b32 v112, 15, v2\nv_lshrrev_b32 v113, 4, v2")
    RL=128
    a("s_cmp_lt_u32 s20, 2\ns_cbranch_scc1 L_w1l\ns_sub_u32 s48, s20, 2")
    srd(a,28,10,11,1<<22)
    a("s_lshl_b32 s46, s48, 1\ns_add_u32 s46, s46, s21\ns_lshl_b32 s46, s46, 12")
    for cc in range(2):
        for it in range(4):
            a(f"buffer_load_dwordx4 v[{RL+16*cc+4*it}:{RL+3+16*cc+4*it}], v3, s[28:31], s46 offen offset:{it*1024}")
            a(f"buffer_load_dword v{RL+32+4*cc+it}, v3, s[28:31], s46 offen offset:{it*1024+16}")
        a("s_add_u32 s46, s46, 4096")
    a("s_waitcnt vmcnt(16)\ns_branch L_kv")
    a("L_w1l:\ns_waitcnt vmcnt(0)")
    WA=64
    a("L_kv:"); stamp(a,1)
    KVL=65536
    a(f"v_mul_u32_u24 v8, 576, v124\nv_lshlrev_b32 v9, 4, v7\nv_sub_u32 v8, v8, v9\nv_add_u32 v8, {KVL+112}, v8")
    unpack(a,56,48,8)
    for c in range(4):
        for r in range(11):
            src=10+2*r+c//2
            a(f"v_lshlrev_b32 v{72+r}, 16, v{src}" if c%2==0 else f"v_and_b32 v{72+r}, 0xffff0000, v{src}")
        for r in range(8):
            src=32+2*r+c//2
            a(f"v_mul_f32 v{84+r}, v{56+4*c+3}, v{72+r}")
            a(f"v_lshlrev_b32 v{92}, 16, v{src}" if c%2==0 else f"v_and_b32 v{92}, 0xffff0000, v{src}")
            a(f"v_fmac_f32 v{84+r}, v{56+4*c+2}, v{73+r}\nv_fmac_f32 v{84+r}, v{56+4*c+1}, v{74+r}\nv_fmac_f32 v{84+r}, v{56+4*c}, v{75+r}")
            a(f"v_mul_f32 v{84+r}, v{84+r}, v92")
        for p in range(4): a(f"v_cvt_pk_bf16_f32 v{96+4*c+p}, v{84+7-2*p}, v{84+6-2*p}")
        a(f"ds_write_b128 v8, v[{96+4*c}:{99+4*c}] offset:{c*144}")
    a(f"s_mul_i32 s47, s20, {UR_STRIDE}\nv_mov_b32 v70, 0\nv_mov_b32 v71, 0\nv_lshlrev_b32 v7, 3, v2\nv_add_u32 v7, s47, v7\nds_write_b64 v7, v[70:71] offset:4096")
    a("s_waitcnt lgkmcnt(0)\ns_barrier")
    a(f"s_mul_i32 s64, s64, 0x9e3779b1\ns_add_u32 s64, s64, 0x7f4a7c15\ns_mov_b32 s65, {WS_FLG}")
    a("s_cmp_ge_u32 s20, 2\ns_cbranch_scc1 L_w1s")
    a(f"v_lshrrev_b32 v8, 3, v0\nv_mul_u32_u24 v8, 144, v8\nv_and_b32 v9, 7, v0\nv_lshl_add_u32 v8, v9, 4, v8\nv_add_u32 v8, {KVL}, v8\nv_lshlrev_b32 v9, 4, v0")
    a(f"s_sub_u32 s18, 31, s59\ns_lshl_b32 s18, s18, 17\ns_lshl_b32 s19, s58, 14\ns_add_u32 s18, s18, s19\ns_add_u32 s18, s18, {WS_UR}")
    for it in range(8): a(f"ds_read_b128 v[{16+4*it}:{19+4*it}], v8 offset:{it*16*144}")
    for it in range(8):
        a(f"s_waitcnt lgkmcnt({7-it})\nbuffer_store_dwordx4 v[{16+4*it}:{19+4*it}], v9, s[32:35], s18 offen offset:{(it&1)*2048} sc1")
        if it&1: a("s_add_u32 s18, s18, 4096")
    a("s_lshl_b32 s73, s58, 8\ns_lshl_b32 s72, s59, 2\ns_add_u32 s72, s72, s73")
    signal(a,0,"s72",1); stamp(a)
    wait(a,0,"s73",112); stamp(a)
    a("s_branch L_cv\nL_w1s:\ns_barrier")
    a(f"s_mul_i32 s48, s48, {2*HP_STRIDE}\ns_add_u32 s48, s48, {HP0}\nv_add_u32 v9, s48, v3\ns_waitcnt vmcnt(0)")
    for i in range(7): a(f"v_mov_b32 v{116+i}, 0")
    for cc in range(2):
        for it in range(4):
            b=RL+16*cc+4*it; o=56+4*it
            a(f"ds_write_b128 v9, v[{b}:{b+3}] offset:{cc*HP_STRIDE+32+it*1024}")
            a(f"v_alignbit_b32 v{o}, v{b+1}, v{b}, 16\nv_alignbit_b32 v{o+1}, v{b+2}, v{b+1}, 16\nv_alignbit_b32 v{o+2}, v{b+3}, v{b+2}, 16\nv_alignbit_b32 v{o+3}, v{RL+32+4*cc+it}, v{b+3}, 16")
            a(f"ds_write_b128 v9, v[{o}:{o+3}] offset:{cc*HP_STRIDE+HP_C1+32+it*1024}")
        h=cc*HP_STRIDE
        a(f"v_lshlrev_b32 v123, 16, v{RL+16*cc}\ns_mov_b64 exec, 1\nds_write_b128 v9, v[116:119] offset:{h}\nds_write_b128 v9, v[116:119] offset:{h+16}\nds_write_b128 v9, v[116:119] offset:{h+HP_C1}\nds_write_b128 v9, v[120:123] offset:{h+HP_C1+16}\ns_mov_b64 exec, -1\ns_waitcnt lgkmcnt(0)")
    a("s_lshl_b32 s47, s20, 8\ns_add_u32 s47, s47, s2\ns_cmp_ge_u32 s47, 540\ns_cbranch_scc1 L_wj")
    srd(a,28,54,55,7168)
    a(f"v_lshlrev_b32 v8, 2, v2\ns_lshl_b32 s47, s2, 8\nbuffer_load_dword v9, v8, s[28:31], s47 offen\nv_and_b32 v10, 3, v2\nv_lshlrev_b32 v10, 7, v10\nv_and_b32 v11, 60, v2\nv_add_u32 v10, v10, v11\ns_lshl_b32 s47, s2, 9\ns_add_u32 s47, s47, {WS_B1F}")
    a("s_waitcnt vmcnt(0)\nv_lshlrev_b32 v11, 16, v9\nv_and_b32 v12, 0xffff0000, v9\nbuffer_store_dword v11, v10, s[32:35], s47 offen sc1\nbuffer_store_dword v12, v10, s[32:35], s47 offen offset:64 sc1")
    a("L_wj:\ns_barrier")
    a("L_cv:")
    a(f"s_add_u32 s19, s20, s21\ns_lshl_b32 s19, s19, 7\ns_add_u32 s19, s19, {WS_UR}\ns_mul_i32 s18, s20, {UR_STRIDE}")
    a("v_lshrrev_b32 v4, 3, v2\nv_lshlrev_b32 v4, 17, v4\nv_and_b32 v5, 7, v2\nv_lshl_add_u32 v4, v5, 4, v4")
    for it in range(4): a(f"s_add_u32 m0, s18, {it*1024}\ns_add_u32 s22, s19, {it*(8<<17)}\nbuffer_load_dwordx4 v4, s[32:35], s22 offen sc1 lds")
    w1l(a); lnq(a)
    a(f"s_mul_i32 s47, s20, {UR_STRIDE}\ns_mul_i32 s48, s20, {HP_STRIDE}\ns_add_u32 s48, s48, {HP0}")
    a("s_lshr_b32 s49, s20, 1\ns_cmp_eq_u32 s49, 0\ns_cselect_b32 s49, s44, s45\ns_lshl_b32 s50, s49, 16\ns_and_b32 s49, s49, 0xffff0000\ns_bitcmp1_b32 s20, 0\ns_cselect_b32 s49, s49, s50")
    a("v_add_u32 v5, 1, v112\nv_lshrrev_b32 v5, 1, v5\nv_lshl_add_u32 v5, v113, 2, v5\nv_lshlrev_b32 v5, 2, v5")
    a(f"v_and_b32 v6, 1, v112\nv_xor_b32 v6, 1, v6\nv_mul_u32_u24 v6, {HP_C1}, v6\nv_add3_u32 v5, v5, v6, s48")
    for q in range(1,4): a(f"v_add_u32 v{5+q}, {1024*q}, v5")
    a(f"v_lshlrev_b32 v9, 5, v112\nv_sub_u32 v9, {2*2032-512*7}, v9\nv_lshl_add_u32 v9, v113, 4, v9\nv_add_u32 v9, s47, v9")
    for i in range(32): a(f"v_accvgpr_write_b32 a{i}, 0")
    a("s_waitcnt vmcnt(12)"); stamp(a,3)
    FA=[128,192]; FB=[160,224]
    def rd(rho,buf):
        L=[]
        for x in range(8):
            L.append(f"ds_read_b128 v[{FB[buf]+4*x}:{FB[buf]+4*x+3}], v9 offset:{512*(7-x)+64*rho}")
            o=(x%2)*128+16*rho
            L.append(f"ds_read2_b32 v[{FA[buf]+4*x}:{FA[buf]+4*x+1}], v{5+x//2} offset0:{o} offset1:{o+1}")
            L.append(f"ds_read2_b32 v[{FA[buf]+4*x+2}:{FA[buf]+4*x+3}], v{5+x//2} offset0:{o+2} offset1:{o+3}")
        return L
    for s in rd(0,0): a(s)
    a("s_mov_b32 s51, 4\nL_cvl:")
    for rho in range(2):
        buf=rho&1; a("s_waitcnt lgkmcnt(0)"); nxt=rd(rho+1,buf^1); n=0
        for aa in range(8):
            for b in range(8-aa):
                J=aa+b
                a(f"{MF} a[{4*J}:{4*J+3}], v[{FA[buf]+4*aa}:{FA[buf]+4*aa+3}], v[{FB[buf]+4*b}:{FB[buf]+4*b+3}], a[{4*J}:{4*J+3}]")
                if n<len(nxt): a(nxt[n]); n+=1
                elif rho==1 and n<len(nxt)+5: a(f"v_add_u32 v{5+n-len(nxt)}, 128, v{5+n-len(nxt)}"); n+=1
    a("s_sub_u32 s51, s51, 1\ns_cmp_lg_u32 s51, 0\ns_cbranch_scc1 L_cvl\ns_waitcnt lgkmcnt(0)")
    if W1B==2: a("s_waitcnt vmcnt(4)"); w1s(a)
    a(f"v_lshlrev_b32 v4, 5, v112\nv_lshl_add_u32 v4, v113, 3, v4\nv_add_u32 v5, s48, v4\nv_sub_u32 v4, {2*2044-512*7}, v4\nv_add_u32 v4, s47, v4")
    for J in range(8): a(f"ds_read_b64 v[{128+2*J}:{129+2*J}], v4 offset:{512*(7-J)}")
    for J in range(8):
        k0=128+2*J
        for r in range(4): a(f"v_accvgpr_read_b32 v{148+r}, a{4*J+r}")
        a(f"s_waitcnt lgkmcnt(7)\nv_and_b32 v144, 0xffff0000, v{k0+1}\nv_lshlrev_b32 v145, 16, v{k0+1}\nv_and_b32 v146, 0xffff0000, v{k0}\nv_lshlrev_b32 v147, 16, v{k0}")
        for r in range(4): a(f"v_fmac_f32 v{148+r}, s49, v{144+r}")
        a(f"v_cvt_pk_bf16_f32 v{152+2*J}, v148, v149\nv_cvt_pk_bf16_f32 v{153+2*J}, v150, v151\nds_write_b64 v5, v[{152+2*J}:{153+2*J}] offset:{512*J}")
    a(f"v_lshlrev_b32 v6, 2, v0\nv_add_u32 v6, {HP0}, v6\ns_waitcnt lgkmcnt(0)\ns_barrier")
    for it in range(4):
        for c in range(4): a(f"ds_read_b32 v{168+4*it+c}, v6 offset:{c*HP_STRIDE+it*1024}")
    a("v_lshrrev_b32 v7, 2, v0\nv_lshlrev_b32 v7, 14, v7\nv_and_b32 v8, 3, v0\nv_lshl_add_u32 v7, v8, 4, v7\ns_lshl_b32 s50, s21, 4")
    for it in range(4):
        b=168+4*it; o=184+4*it
        a(f"s_waitcnt lgkmcnt({12-4*it})\nv_perm_b32 v{o}, v{b+1}, v{b}, s68\nv_perm_b32 v{o+1}, v{b+3}, v{b+2}, s68\nv_perm_b32 v{o+2}, v{b+1}, v{b}, s69\nv_perm_b32 v{o+3}, v{b+3}, v{b+2}, s69")
        a(f"buffer_store_dwordx4 v[{o}:{o+3}], v7, s[32:35], s50 offen sc1\ns_add_u32 s50, s50, {64*16384}")
def w1s(a):
    a("s_lshl_b32 s46, s20, 8\ns_add_u32 s46, s46, s2\ns_cmp_ge_u32 s46, 896\ns_cbranch_scc1 L_we")
    a(f"s_mul_i32 s46, s22, {14*1024}\ns_add_u32 s46, s46, {WS_W1F}\ns_lshl_b32 s23, s23, 3")
    for x in range(8):
        o=200+4*x; b=80
        a(f"s_add_u32 s36, s23, {x}\ns_mul_i32 s37, s36, 4682\ns_lshr_b32 s37, s37, 16\ns_mul_i32 s37, s37, {32*14-14}\ns_add_u32 s36, s36, s37\ns_lshl_b32 s36, s36, 10\ns_add_u32 s36, s36, s46")
        for p in range(4): a(f"v_perm_b32 v{o+p}, v{b+4*(2*p+1)+x//2}, v{b+4*(2*p)+x//2}, s{68+(x&1)}")
        a(f"buffer_store_dwordx4 v[{o}:{o+3}], v3, s[32:35], s36 offen sc1")
    a("L_we:")
X=32
def stats(a, off):
    a(f"v_pk_add_f32 v[28:29], v[{X}:{X+1}], v[{X+2}:{X+3}]\nv_pk_mul_f32 v[30:31], v[{X}:{X+1}], v[{X}:{X+1}]")
    for e in range(2,32,2):
        if e>2: a(f"v_pk_add_f32 v[28:29], v[28:29], v[{X+e}:{X+e+1}]")
        a(f"v_pk_fma_f32 v[30:31], v[{X+e}:{X+e+1}], v[{X+e}:{X+e+1}], v[30:31]")
    a("v_add_f32 v28, v28, v29\nv_add_f32 v29, v30, v31")
    a("s_nop 1\nv_permlane32_swap_b32 v28, v29\ns_nop 1\nv_add_f32 v28, v28, v29\nv_mov_b32 v29, v28\ns_nop 1\nv_permlane16_swap_b32 v28, v29\ns_nop 1\nv_add_f32 v28, v28, v29\ns_nop 1")
    a("v_add_f32_dpp v28, v28, v28 row_ror:8 row_mask:0xf bank_mask:0xf")
    a(f"ds_write_b32 v25, v28 offset:{off}\ns_waitcnt lgkmcnt(0)\ns_barrier\nds_read_b128 v[132:135], v24 offset:{off}\nds_read_b128 v[136:139], v24 offset:{off+16}")
    a("s_mov_b32 s54, 0x3a800000\ns_mov_b32 s55, 0x3727c5ac\ns_waitcnt lgkmcnt(0)")
    a("v_add_f32 v132, v132, v133\nv_add_f32 v134, v134, v135\nv_add_f32 v136, v136, v137\nv_add_f32 v138, v138, v139\nv_add_f32 v132, v132, v134\nv_add_f32 v136, v136, v138")
    a("v_mul_f32 v132, s54, v132\nv_mul_f32 v136, s54, v136\nv_fma_f32 v136, -v132, v132, v136\nv_max_f32 v136, 0, v136\nv_add_f32 v136, s55, v136\nv_rsq_f32 v136, v136\ns_nop 0\nv_mul_f32 v132, -v132, v136\nv_mov_b32 v137, v136\nv_mov_b32 v133, v132")
def g1_pre(a):
    g1_setup(a)
    a("s_mov_b32 s44, 0\ns_and_b32 s21, s20, 1\ns_lshr_b32 s22, s20, 1")
    a(f"v_lshrrev_b32 v4, 4, v2\nv_lshlrev_b32 v4, 4, v4\ns_mul_i32 s23, s17, 896\ns_mul_i32 s24, s22, 448\ns_add_u32 s23, s23, s24\ns_add_u32 s23, s23, {WS_B1F}")
    for i in range(7): a(f"buffer_load_dwordx4 v[{104+4*i}:{107+4*i}], v4, s[32:35], s23 offen offset:{64*i}")
def g1_w(a):
    a(f"s_add_u32 s43, s43, {3*28672}\ns_cmp_eq_u32 s20, 0\ns_cbranch_scc1 L_gw\ns_sub_u32 s46, s20, 1\ns_mul_i32 s47, s46, 28672\ns_mul_i32 s48, s17, 458752\ns_add_u32 s47, s47, s48\ns_add_u32 s47, s47, {WS_W1F}\ns_mul_i32 s46, s46, {ST}")
    for c in range(7):
        a(f"s_add_u32 m0, s46, {16384+c*4096}\ns_add_u32 s48, s47, {c*4096}")
        for i in range(4): a(f"buffer_load_dwordx4 v3, s[32:35], s48 offen offset:{i*1024} lds")
    a("L_gw:")
def flag8(a,ph,n,cond):
    a(f"{cond}\ns_cbranch_scc1 {n}\ns_add_u32 s66, s70, {WS_FLG+ph*0x4000}\nv_mov_b32 v12, s64\nv_lshlrev_b32 v13, 10, v2\ns_mov_b64 exec, 0xff\nbuffer_store_dword v12, v13, s[32:35], s66 offen sc1\ns_mov_b64 exec, -1\n{n}:")
def main():
    a=Asm()
    a("s_cmp_ge_u32 s2, 256\ns_cbranch_scc1 L_end\ns_mov_b32 s76, 0"); stamp(a)
    tilemap(a,4,8); a("s_lshl_b32 s70, s16, 4\ns_add_u32 s70, s70, s17\ns_lshl_b32 s70, s70, 2\ns_and_b32 s77, s2, 7\ns_lshl_b32 s77, s77, 10\ns_lshl_b32 s79, s16, 8\ns_lshl_b32 s78, s17, 2\ns_add_u32 s78, s78, s79\ns_and_b32 s71, s78, 0xffe0")
    a(f"s_mov_b32 s60, 0\ns_mov_b32 s61, {WS_XN[0]}\ns_mov_b32 s62, {WS_UR}\ns_mov_b32 s63, {WS_H[0]}")
    front(a)
    if W1B==1: a("s_waitcnt vmcnt(8)"); w1s(a)
    stamp(a)
    signal(a,1,"s70","0xff"); stamp(a)
    a("s_cmp_eq_u32 s20, 0\ns_cbranch_scc1 L_w2le"); w2l(a,"L_w2le"); a("L_w2le:"); unpack(a,X,64,16); stats(a,0)
    for i in range(64): a(f"v_accvgpr_write_b32 a{i}, 0")
    a("s_waitcnt vmcnt(32)"); wait(a,1,"s77",1008); stamp(a)
    for i in range(4):
        for hh in range(2): a(f"buffer_load_dwordx2 v[{80+4*i+2*hh}:{81+4*i+2*hh}], v15, s[32:35], s52 offen offset:{i*1024+hh*64} sc1")
    a("s_cmp_lg_u32 s20, 0\ns_cbranch_scc1 L_w2m"); w2l(a,"L_w2m"); g1_pre(a)
    a("s_waitcnt vmcnt(39)\ns_branch L_w2n\nL_w2m:"); g1_pre(a); a("s_waitcnt vmcnt(7)\nL_w2n:")
    for p in range(16): a(f"v_accvgpr_write_b32 a{128+p}, v{80+p}")
    a("L_lnc:"); stamp(a)
    for p in range(16):
        a(f"v_lshlrev_b32 v28, 16, v{80+p}\nv_and_b32 v29, 0xffff0000, v{80+p}\nv_pk_fma_f32 v[30:31], v[{X+2*p}:{X+2*p+1}], v[136:137], v[132:133]\nv_pk_fma_f32 v[{X+2*p}:{X+2*p+1}], v[30:31], v[28:29], v[{X+2*p}:{X+2*p+1}]\nv_cvt_pk_bf16_f32 v{64+p}, v{X+2*p}, v{X+2*p+1}")
    a("s_add_u32 s52, s52, s62")
    unpack(a,X,64,16)
    a("s_cmp_eq_u32 s60, 0\ns_cbranch_scc1 L_x1k")
    for i in range(4): a(f"buffer_store_dwordx4 v[{64+4*i}:{67+4*i}], v14, s[32:35], s52 offen offset:{128*i} sc1")
    a("L_x1k:")
    stats(a,256)
    for i in range(4):
        for e in range(8*i,8*i+8,2): a(f"v_pk_fma_f32 v[{X+e}:{X+e+1}], v[{X+e}:{X+e+1}], v[136:137], v[132:133]")
        for p in range(4*i,4*i+4): a(f"v_cvt_pk_bf16_f32 v{80+p}, v{X+2*p}, v{X+2*p+1}")
        a(f"buffer_store_dwordx4 v[{80+4*i}:{83+4*i}], v26, s[32:35], s53 offen sc1\ns_add_u32 s53, s53, 16384")
    for p in range(16): a(f"v_accvgpr_write_b32 a{240+p}, v{64+p}")
    a("s_waitcnt vmcnt(4)")
    for i in range(7):
        for j in range(4):
            for r in (0,2): a(f"v_pk_mov_b32 v[{132+4*(4*i+j)+r}:{133+4*(4*i+j)+r}], v[{104+4*i+r}:{105+4*i+r}], v[{104+4*i+r}:{105+4*i+r}] op_sel:[0,1]")
    stamp(a); signal(a,2,"s78",1); stamp(a); g1_w(a)
    wait(a,2,"s79",48); stamp(a)
    g1_body(a,"g1",pre=lambda: w2s(a), mega=lambda: a(f"s_or_b32 s66, s60, s20\ns_cmp_lg_u32 s66, 0\ns_cbranch_scc1 L_w2f\ns_add_u32 s66, s70, {WS_FLG+8*0x4000}\nv_mov_b32 v12, s64\nv_lshlrev_b32 v13, 10, v2\ns_mov_b64 exec, 0xff\nbuffer_store_dword v12, v13, s[32:35], s66 offen sc1\ns_mov_b64 exec, -1\nL_w2f:"))
    a("s_cmp_lg_u32 s60, 0\ns_cbranch_scc1 L_w2g"); wait(a,8,"s77",1008); a("L_w2g:")
    stamp(a); signal(a,3,"s78",1); stamp(a)
    g2_body(a,"g2",mega=lambda: (wait(a,3,"s71",16), stamp(a)))
    stamp(a)
    a("s_branch L_fin\nL_g2e:"); stamp(a)
    a(f"s_mov_b32 s60, 1\ns_mov_b32 s61, {WS_XN[1]}\ns_mov_b32 s63, {WS_H[1]}")
    g1_pre(a); ln_addr(a)
    for p in range(16): a(f"v_accvgpr_read_b32 v{80+p}, a{128+p}\nv_accvgpr_read_b32 v{64+p}, a{240+p}")
    unpack(a,X,64,16)
    signal(a,4,"s78",1); stamp(a)
    a(f"s_or_b32 s54, s2, s20\ns_cmp_lg_u32 s54, 0\ns_cbranch_scc1 L_nn\nv_mov_b32 v12, s64\nv_mov_b32 v13, 0\ns_mov_b32 s54, {WS_NONCE}\ns_mov_b64 exec, 1\nbuffer_store_dword v12, v13, s[32:35], s54 offen sc1\ns_mov_b64 exec, -1\nL_nn:")
    wait(a,4,"s79",48); stamp(a)
    a(f"s_add_u32 s54, s52, {WS_UR}\ns_add_u32 s55, s52, {WS_Y}\ns_add_u32 s65, s65, {3*0x4000}")
    for i in range(4):
        for k in range(2): a(f"buffer_load_dwordx4 v[{140+16*k+4*i}:{143+16*k+4*i}], v14, s[32:35], s{54+k} offen offset:{128*i} sc1")
    for i in range(64): a(f"v_accvgpr_write_b32 a{i}, 0")
    for p in range(16):
        if p%4==0: a(f"s_waitcnt vmcnt({6-p//2})")
        a(f"v_lshlrev_b32 v28, 16, v{140+p}\nv_and_b32 v29, 0xffff0000, v{140+p}\nv_lshlrev_b32 v30, 16, v{156+p}\nv_and_b32 v31, 0xffff0000, v{156+p}\nv_pk_add_f32 v[28:29], v[28:29], v[30:31]")
        a(f"v_pk_add_f32 v[28:29], v[28:29], v[{X+2*p}:{X+2*p+1}]\nv_cvt_pk_bf16_f32 v30, v28, v29\nv_lshlrev_b32 v{X+2*p}, 16, v30\nv_and_b32 v{X+2*p+1}, 0xffff0000, v30")
    stats(a,0)
    a("s_branch L_lnc\nL_fin:")
    if STAMP:
        a("s_waitcnt vmcnt(0)"); stamp(a)
        a(f"v_lshlrev_b32 v2, 2, v0\ns_lshl_b32 s74, s2, 10\ns_add_u32 s74, s74, {WS_DBG}\nv_writelane_b32 v1, s76, 63\nbuffer_store_dword v1, v2, s[32:35], s74 offen")
    a("L_end:\ns_endpgm")
    N="interleave_layers__ssm_conv_h3__dense_activation_squared_relu__prompt"
    hdr="".join(l for l in open(f"cdna_kernels/{N}.s.ref").readlines()[:15])
    out=sys.argv[1] if len(sys.argv)>1 else f"cdna_kernels/{N}.s"
    t=assemble_file([(N+"_kernel",256,256,LN_LDS+1024)],[(N+"_kernel",a.text(),kernel_desc(N+"_kernel",512,256))])
    if not os.environ.get("LIST"): t=t.replace(f"kernel={N}_kernel ","")
    open(out,"w").write(hdr+t)
main()
```

```python
from common import *
from k_conv import *
MF="v_mfma_f32_16x16x32_bf16"
G1MAP=eval(os.environ.get("G1MAP","(8,4)"))
LSC=os.environ.get("LSC","").replace("_"," ")
def tilemap(a, mtx, ntx):
    import math
    lg=lambda x:int(math.log2(x)); nxn=16//ntx
    a(f"s_and_b32 s18, s2, 7\ns_lshr_b32 s19, s2, 3\ns_lshr_b32 s16, s18, {lg(nxn)}\ns_lshl_b32 s16, s16, {lg(mtx)}\ns_lshr_b32 s17, s19, {lg(ntx)}\ns_add_u32 s16, s16, s17")
    a(f"s_and_b32 s17, s18, {nxn-1}\ns_lshl_b32 s17, s17, {lg(ntx)}\ns_and_b32 s19, s19, {ntx-1}\ns_add_u32 s17, s17, s19")
ST=45056
PT=int(os.environ.get("PT","0"))
def g1_setup(a):
    a("s_lshl_b32 s40, s20, 12\ns_mul_i32 s41, s20, 7168")
    a(f"s_lshl_b32 s42, s16, 18\ns_add_u32 s42, s42, s40\ns_add_u32 s42, s42, s61")
    a(f"s_mul_i32 s43, s17, 458752\ns_add_u32 s43, s43, s41\ns_add_u32 s43, s43, {WS_W1F}\ns_add_u32 s41, s41, 16384\ns_mov_b32 s44, 0")
def g1_issue_w():
    L=[f"s_add_u32 m0, s41, s44\ns_add_u32 s45, s43, 4096\nbuffer_load_dwordx4 v3, s[32:35], s43 offen lds"]
    for i in range(1,4): L.append(f"buffer_load_dwordx4 v3, s[32:35], s43 offen offset:{i*1024} lds")
    L.append(f"s_add_u32 m0, m0, 4096\ns_add_u32 s43, s43, 28672\nbuffer_load_dwordx4 v3, s[32:35], s45 offen lds")
    for i in range(1,3): L.append(f"buffer_load_dwordx4 v3, s[32:35], s45 offen offset:{i*1024} lds")
    return L
def g1_issue_x():
    L=[f"s_add_u32 m0, s40, s44\ns_add_u32 s44, s44, {ST}\nbuffer_load_dwordx4 v3, s[32:35], s42 offen lds{LSC}"]
    for i in range(1,4): L.append(f"buffer_load_dwordx4 v3, s[32:35], s42 offen offset:{i*1024} lds{LSC}")
    L[-1]+=f"\ns_add_u32 s42, s42, 16384\ns_cmp_eq_u32 s44, {3*ST}\ns_cselect_b32 s44, 0, s44"
    return L
def w2rel_loads(a, R, name):
    a("s_load_dwordx2 s[4:5], s[0:1], 72\ns_lshl_b32 s46, s2, 2\ns_add_u32 s46, s46, s20\ns_waitcnt lgkmcnt(0)")
    srd(a,28,4,5,3584*2048)
    a("s_and_b32 s47, s46, 7\ns_lshr_b32 s48, s46, 3\ns_lshr_b32 s49, s48, 2\ns_lshl_b32 s49, s49, 18\ns_and_b32 s50, s48, 3\ns_lshl_b32 s50, s50, 12\ns_add_u32 s49, s49, s50\ns_lshl_b32 s50, s47, 8\ns_add_u32 s49, s49, s50")
    a("v_lshrrev_b32 v10, 4, v2\nv_lshlrev_b32 v10, 16, v10\nv_and_b32 v11, 15, v2\nv_lshl_add_u32 v10, v11, 3, v10")
    for hf in range(2):
        for t in range(8):
            a(f"s_add_u32 s50, s49, {(8*(t&3)+(t>>2))*2048}\nbuffer_load_dwordx2 v[{R+16*hf+2*t}:{R+1+16*hf+2*t}], v10, s[28:31], s50 offen offset:{128*hf}")
    a(f"s_mul_i32 s49, s47, {2*112*4096}\ns_lshl_b32 s50, s48, 12\ns_add_u32 s49, s49, s50\ns_add_u32 s49, s49, {WS_W2F}")
    a("s_mov_b32 s47, 0x05040100\ns_mov_b32 s48, 0x07060302")
def w2rel_stores(a, R, O):
    for hf in range(2):
        for x in range(4):
            o=O+16*hf+4*x
            for p in range(4): a(f"v_perm_b32 v{o+p}, v{R+16*hf+2*(2*p+1)+x//2}, v{R+16*hf+2*(2*p)+x//2}, s{47+(x&1)}")
            a(f"buffer_store_dwordx4 v[{o}:{o+3}], v3, s[32:35], s49 offen offset:{x*1024}{SC}")
        a(f"s_add_u32 s49, s49, {112*4096}")
def g1_body(a, name, mega=False, pre=None):
    P=16; Q=60; BI=104; R=132; O=164
    if mega:
        for s in g1_issue_x()+g1_issue_x()+g1_issue_x(): a(s)
    else:
      a("s_and_b32 s21, s20, 1\ns_lshr_b32 s22, s20, 1")
      a(f"v_lshrrev_b32 v4, 4, v2\nv_lshlrev_b32 v4, 4, v4\ns_mul_i32 s23, s17, 896\ns_mul_i32 s24, s22, 448\ns_add_u32 s23, s23, s24\ns_add_u32 s23, s23, {WS_B1F}")
      for i in range(7): a(f"buffer_load_dwordx4 v[{BI+4*i}:{BI+4*i+3}], v4, s[32:35], s23 offen offset:{64*i}")
      for s in g1_issue_w()+g1_issue_x()+g1_issue_w()+g1_issue_x(): a(s)
    a("s_lshl_b32 s24, s21, 12\ns_mul_i32 s25, s22, 7168\ns_add_u32 s25, s25, 16384")
    a("v_add_u32 v5, s24, v3\nv_add_u32 v8, s25, v3\nv_mov_b32 v6, v5\nv_mov_b32 v9, v8\ns_mov_b32 s36, 0")
    a(f"s_mul_i32 s26, s16, 917504\ns_mul_i32 s27, s17, {7*8192}\ns_add_u32 s26, s26, s27\ns_lshl_b32 s27, s21, 12\ns_add_u32 s26, s26, s27\ns_add_u32 s26, s26, s63")
    def reads(kbl,R):
        w=[f"ds_read_b128 v[{R+16+4*i}:{R+19+4*i}], v9 offset:{kbl*14336+i*1024}" for i in range(7)]
        x=[f"ds_read_b128 v[{R+4*j}:{R+4*j+3}], v6 offset:{kbl*8192+j*1024}" for j in range(4)]
        return [w[0]]+x+w[1:]
    def mfmas(R, extra):
        c=0
        for i in range(7):
            for j in range(4):
                d=132+4*(4*i+j)
                a(f"{MF} v[{d}:{d+3}], v[{R+16+4*i}:{R+19+4*i}], v[{R+4*j}:{R+4*j+3}], v[{d}:{d+3}]")
                if c in extra: a(extra[c])
                c+=1
    if not mega: a("s_waitcnt vmcnt(22)")
    for i in range(0 if mega else 7):
        for j in range(4):
            for r in range(4): a(f"v_accvgpr_write_b32 a{4*(4*i+j)+r}, v{BI+4*i+r}")
    pre(); a("s_barrier"); stamp(a,1)
    for s in reads(0,P): a(s)
    for s in ([] if mega else g1_issue_w()+g1_issue_x()): a(s)
    nxt=[f"s_add_u32 s36, s36, {ST}\ns_cmp_eq_u32 s36, {3*ST}\ns_cselect_b32 s36, 0, s36","v_add_u32 v6, s36, v5","v_add_u32 v9, s36, v8"]
    def step(vm, dma, last=False, loop=None):
        a("s_waitcnt lgkmcnt(0)")
        ex=dict(enumerate(reads(1,Q)+([] if last else nxt)))
        d=g1_issue_w()+g1_issue_x() if dma else []
        if not last: ex[17]=f"s_waitcnt vmcnt({vm}) lgkmcnt(0)\ns_barrier"
        for k in range(min(4,len(d))): ex[19+2*k]=d[k]
        mfmas(P, ex)
        if last: a("s_waitcnt lgkmcnt(0)")
        ex=dict(enumerate([] if last else reads(0,P)))
        for k in range(4,len(d)): ex[12+2*(k-4)]=d[k]
        if PT and (dma or vm==12): ex[11]="buffer_store_dwordx4 v[104:107], v3, s[32:35], s38 offen sc1\ns_add_u32 s38, s38, 1024"
        if loop: ex[26]="s_sub_u32 s37, s37, 1\ns_cmp_lg_u32 s37, 0"
        mfmas(Q, ex)
        if loop: a(f"s_cbranch_scc1 {loop}")
    a(f"s_lshl_b32 s27, s21, 12\ns_sub_u32 s38, s26, s27\ns_mul_i32 s27, s20, 14336\ns_add_u32 s38, s38, s27\ns_mov_b32 s37, 13\nL_cl_{name}:"); step(11+PT,True,loop=f"L_cl_{name}")
    mega(); step(11+PT,False); step(0,False)
    a("s_waitcnt lgkmcnt(0)"); stamp(a,3)
    def act(d, T):
        U=132+d
        return [f"v_max_f32 v{U+r}, 0, v{U+r}" for r in range(4)]+[f"v_pk_mul_f32 v[{U+r}:{U+r+1}], v[{U+r}:{U+r+1}], v[{U+r}:{U+r+1}]" for r in (0,2)]+[f"v_cvt_pk_bf16_f32 v{T+r//2}, v{U+r}, v{U+r+1}" for r in (0,2)]
    mf=lambda R,i,j:f"{MF} v[{132+16*i+4*j}:{135+16*i+4*j}], v[{R+16+4*i}:{R+19+4*i}], v[{R+4*j}:{R+4*j+3}], v[{132+16*i+4*j}:{135+16*i+4*j}]"
    rq=reads(1,Q); NP=3
    for c in range(4*NP):
        a(mf(P,c//4,c%4))
        if c<len(rq): a(rq[c])
    a(f"s_cmp_eq_u32 s22, 1\ns_cbranch_scc1 L_ep1_{name}")
    for wn in range(2):
        if wn==1: a(f"s_branch L_epd_{name}\nL_ep1_{name}:")
        groups=[(0,[0,1]),(1,[2,3]),(2,[4,5]),(3,[6])] if wn==0 else [(3,[0]),(4,[1,2]),(5,[3,4]),(6,[5,6])]
        M=[mf(P,NP,j) for j in range(4)]; M[3]+="\ns_waitcnt lgkmcnt(0)"; done={}
        for i in range(7):
            if i>NP: M+=[mf(P,i,j) for j in range(4)]
            M+=[mf(Q,i,j) for j in range(4)]; done[i]=len(M)
        V=[]; n=0
        for u,ii in groups:
            for j in range(4):
                T=104+4*(n%7); n+=1; L=[]
                for q,i in enumerate(ii): L+=act(4*(4*i+j), T+2*q)
                L.append(f"s_add_u32 s27, s26, {u*8192}\n"+(f"buffer_store_dwordx4 v[{T}:{T+3}], v3, s[32:35], s27 offen offset:{j*1024}{SC}" if len(ii)==2 else f"buffer_store_dwordx2 v[{T}:{T+1}], v3, s[32:35], s27 offen offset:{j*1024+8*wn}{SC}"))
                V+=[(done[ii[-1]]+3,x) for x in L]
        for c,m in enumerate(M):
            a(m)
            for _ in range(3):
                if V and V[0][0]<=c: a(V.pop(0)[1])
        for _,x in V: a(x)
    a(f"L_epd_{name}:")
def gen_g1(name):
    a=Asm(); a(f"B_{name}:")
    a(f"s_cmp_ge_u32 s2, 256\ns_cbranch_scc1 L_end_{name}")
    stamp(a,0)
    a("s_load_dwordx2 s[14:15], s[0:1], 104")
    a("v_lshrrev_b32 v1, 6, v0\nv_and_b32 v2, 63, v0\nv_lshlrev_b32 v3, 4, v2\nv_readfirstlane_b32 s20, v1")
    tilemap(a,*G1MAP)
    g1_setup(a)
    a("s_waitcnt lgkmcnt(0)")
    srd(a,32,14,15,WS_SIZE)
    g1_body(a,name)
    stamp(a,4); stamp_out(a,name,5)
    a(f"L_end_{name}:\ns_endpgm")
    return a.text(), (196+112,196,256,256,3*ST)

WS_XCH=0x6000000
def g2_body(a, name, mega):
    a("s_load_dwordx4 s[4:7], s[0:1], 80\ns_load_dwordx2 s[14:15], s[0:1], 104")
    a("s_lshr_b32 s46, s17, 3\ns_and_b32 s47, s20, 1\ns_and_b32 s48, s17, 7\ns_lshl_b32 s48, s48, 1\ns_lshr_b32 s23, s20, 1\ns_add_u32 s48, s48, s23\ns_mul_i32 s49, s46, 56\ns_lshl_b32 s44, s20, 12")
    a(f"s_mul_i32 s21, s16, 917504\ns_lshl_b32 s22, s49, 13\ns_add_u32 s21, s21, s22\ns_add_u32 s21, s21, s63\ns_add_u32 s21, s21, s44")
    a(f"s_mul_i32 s22, s48, 458752\ns_lshl_b32 s49, s49, 1\ns_add_u32 s49, s49, s47\ns_lshl_b32 s49, s49, 11\ns_add_u32 s22, s22, s49\ns_add_u32 s22, s22, {WS_W2F}")
    a("s_waitcnt lgkmcnt(0)")
    srd(a,28,4,5,2048)
    srd(a,24,6,7,1<<22)
    a("v_and_b32 v5, 15, v2\nv_lshlrev_b32 v5, 11, v5\nv_lshrrev_b32 v6, 4, v2\nv_lshlrev_b32 v6, 4, v6\nv_add_u32 v5, v5, v6\nv_add_u32 v4, 4096, v3\nv_add_u32 v7, 8192, v3")
    a("s_lshl_b32 s36, s16, 18\ns_lshl_b32 s37, s46, 17\ns_add_u32 s36, s36, s37\ns_lshl_b32 s37, s48, 1\ns_add_u32 s37, s37, s47\ns_lshl_b32 s37, s37, 6\ns_add_u32 s36, s36, s37\ns_add_u32 s38, s36, s62")
    a(f"s_mul_i32 s49, s46, {(WS_Y-WS_UR-(1<<17))&0xffffffff:#x}\ns_cmp_eq_u32 s60, 0\ns_cselect_b32 s49, s49, 0\ns_cselect_b32 s41, 0x40000000, 0\ns_add_u32 s38, s38, s49\nv_or_b32 v32, s41, v5")
    a(f"s_lshl_b32 s50, s17, 2\ns_add_u32 s50, s50, s20\ns_lshl_b32 s50, s50, 13\ns_xor_b32 s51, s50, {32<<13}\ns_mul_i32 s49, s16, 917504\ns_add_u32 s49, s49, {WS_H[0]}\ns_add_u32 s50, s50, s49\ns_add_u32 s51, s51, s49")
    P=36; Q=68; W=104; NS=int(os.environ.get("NS","3"))
    def wld(s):
        R=W+16*(s%8); L=[f"buffer_load_dwordx4 v[{R+4*i}:{R+4*i+3}], v{3+i//2}, s[32:35], s22 offen offset:{(i&1)*1024}" for i in range(4)]
        L[-1]+="\ns_add_u32 s22, s22, 8192"; return L
    def hld(s):
        L=[f"buffer_load_dwordx4 v3, s[32:35], s21 offen offset:{i*1024} lds" for i in range(4)]
        L[0]=f"s_add_u32 m0, s44, {(s%8)*16384}\ns_nop 0\n"+L[0]; L[-1]+="\ns_add_u32 s21, s21, 16384"; return L
    def reads(s,kbl,R):
        L=[f"ds_read_b128 v[{R+4*j}:{R+4*j+3}], v{102+(s%8)//4} offset:{(s%4)*16384+kbl*8192+j*1024}" for j in range(8)]
        return [L[2*i]+"\n"+L[2*i+1] for i in range(4)]
    BP=int(os.environ.get("BP","13"))
    def mfmas(R, Wr, ex):
        for c in range(16):
            a(f"{MF} a[{4*c}:{4*c+3}], v[{Wr+4*(c&1)}:{Wr+4*(c&1)+3}], v[{R+4*(c//2)}:{R+4*(c//2)+3}], a[{4*c}:{4*c+3}]")
            if c in ex: a(ex[c])
    def step(s, vm, d, last=False, loop=None):
        a("s_waitcnt lgkmcnt(0)")
        ex=dict(enumerate(reads(s,1,Q))); d=list(d)
        for c in range(5,BP,2):
            if len(d)>4: ex[c]=d.pop(0)
        if not last: ex[BP]=f"s_waitcnt vmcnt({vm})\ns_barrier"
        mfmas(P, W+16*(s%8), ex)
        a("s_waitcnt lgkmcnt(0)")
        ex=dict(enumerate([] if last else reads(s+1,0,P)))
        for c in range(5,15,2):
            if d: ex[c]=d.pop(0)
        if loop: ex[15]="s_sub_u32 s39, s39, 1\ns_cmp_lg_u32 s39, 0"
        mfmas(Q, W+16*(s%8)+8, ex)
        if loop: a(f"s_cbranch_scc1 {loop}")
    a("v_mov_b32 v102, v3\nv_add_u32 v103, 0x10000, v3")
    for s in range(NS):
        for x in wld(s): a(x)
    mega()
    for s in range(NS):
        for x in hld(s): a(x)
    assert NS==3
    a(f"s_waitcnt vmcnt(4)\ns_barrier")
    for x in reads(0,0,P): a(x)
    NL=(28-NS)//8
    a(f"s_mov_b32 s39, {NL}\nL_cl_{name}:")
    for s in range(8): step(s,8*NS-12,wld(s+NS)+hld(s+NS),loop=f"L_cl_{name}" if s==7 else None)
    ex=[f"s_add_u32 s49, s38, {jj*32768}\nbuffer_load_dwordx4 v[{16+4*jj}:{19+4*jj}], v32, s[32:35], s49 offen sc1" for jj in range(4)]
    ex[0]+="\nbuffer_load_dwordx4 v[8:11], v6, s[28:31], s37 offen"
    for s in range(8*NL,27):
        if s+NS<28: step(s,8*NS-12,wld(s+NS)+hld(s+NS))
        else: step(s,max(0,8*(26-s))+(5 if s+NS>28 else 0),ex if s+NS==28 else [],last=s==27)
    OWN=36; EX=104; RD=152
    WL=W+16*(27%8); T0=176
    mf=lambda R,o,c:f"{MF} a[{4*c}:{4*c+3}], v[{WL+o+4*(c&1)}:{WL+o+4*(c&1)+3}], v[{R+4*(c//2)}:{R+4*(c//2)+3}], a[{4*c}:{4*c+3}]"
    def fin(first, V):
        A=list(range(8*first,8*first+8)); B=list(range(8-8*first,16-8*first))
        M=[mf(P,0,c) for c in A]+[mf(P,0,c) for c in B[:4]]+[mf(Q,8,c) for c in A]+[mf(P,0,c) for c in B[4:]]+[mf(Q,8,c) for c in B]
        rq=reads(27,1,Q)
        if first: rq=rq[2:]+rq[:2]
        for c,m in enumerate(M):
            if c==12: a("s_waitcnt lgkmcnt(0)")
            a(m)
            if c<4: a(rq[c])
            for _ in range(3):
                if V and V[0][0]<=c: a(V.pop(0)[1])
        a("s_nop 7")
        for _,x in V: a(x)
    a("s_waitcnt lgkmcnt(0)"); stamp(a,3)
    a(f"s_cmp_lg_u32 s60, 0\ns_cbranch_scc1 L_l1_{name}\ns_sub_u32 s49, s46, 1")
    V=[(4,"s_waitcnt vmcnt(0)")]
    for r in range(4): V+=[(4,f"v_and_b32 v{8+r}, s49, v{8+r}"),(4,f"v_lshlrev_b32 v{16+r}, 16, v{8+r}"),(4,f"v_and_b32 v{20+r}, 0xffff0000, v{8+r}")]
    for tb in range(8):
        T=T0+8*tb; w=17+2*tb if tb<4 else 99
        V+=[(w,f"v_accvgpr_read_b32 v{T+e}, a{8*tb+e}") for e in range(8)]
        V+=[(w,f"v_pk_add_f32 v[{T+e}:{T+e+1}], v[{T+e}:{T+e+1}], v[{16+e}:{17+e}]") for e in range(0,8,2)]
        V+=[(w,f"v_cvt_pk_bf16_f32 v{T+r}, v{T+r}, v{T+4+r}") for r in range(4)]
        V+=[(w,f"buffer_store_dwordx4 v[{T}:{T+3}], v5, s[32:35], s38 offen sc1\ns_add_u32 s38, s38, 32768")]
    fin(0,V)
    a(f"s_branch L_g2e\nL_l1_{name}:\ns_cmp_eq_u32 s46, 1\ns_cbranch_scc1 L_k1_{name}")
    for k in range(2):
        if k==1: a(f"s_branch L_kd_{name}\nL_k1_{name}:")
        V=[(4,f"v_mov_b32 v{EX+4*t+3}, s64") for t in range(6)]
        for t in range(6):
            w=16+min(7,(6*t+5)//4)
            V+=[(w,f"v_accvgpr_read_b32 v{128+u}, a{32*(1-k)+6*t+u}") for u in range(6 if t<5 else 2)]
            V+=[(w,f"v_cvt_pk_bf16_f32 v{EX+4*t+u}, v{128+2*u}, v{129+2*u}") for u in range(3 if t<5 else 1)]
            V+=[(w,f"buffer_store_dwordx4 v[{EX+4*t}:{EX+4*t+3}], v{[3,4,7][t//4]}, s[32:35], s50 offen offset:{(t%4)*1024} sc1")]
        V+=[(99,f"v_accvgpr_read_b32 v{OWN+t}, a{32*k+t}") for t in range(32)]
        fin(1-k,V)
    a(f"L_kd_{name}:\ns_waitcnt vmcnt(6)\ns_mov_b32 s39, 0x40000")
    for r in range(4):
        a(f"v_lshlrev_b32 v33, 16, v{8+r}\nv_and_b32 v34, 0xffff0000, v{8+r}")
        for jj in range(4): a(f"v_add_f32 v{OWN+8*jj+r}, v{OWN+8*jj+r}, v33\nv_add_f32 v{OWN+8*jj+4+r}, v{OWN+8*jj+4+r}, v34")
    a(("" if os.environ.get("ND") else "s_waitcnt vmcnt(0)\n")+f"L_px_{name}:")
    for t in range(6): a(f"buffer_load_dwordx4 v[{RD+4*t}:{RD+4*t+3}], v{[3,4,7][t//4]}, s[32:35], s51 offen offset:{(t%4)*1024} sc1")
    a(f"s_waitcnt vmcnt(0)\nv_mov_b32 v33, 0")
    for t in range(0,6,2): a(f"v_xor_b32 v34, s64, v{RD+4*t+3}\nv_xor_b32 v35, s64, v{RD+4*t+7}\nv_or3_b32 v33, v33, v34, v35")
    a(f"v_cmp_ne_u32 vcc, 0, v33\ns_cmp_eq_u64 vcc, 0\ns_cbranch_scc1 L_pd_{name}\ns_sub_u32 s39, s39, 1\ns_cmp_lg_u32 s39, 0\ns_cbranch_scc1 L_px_{name}\nL_pd_{name}:")
    stamp(a,3)
    for jj in range(4):
        for p in range(4*jj,4*jj+4):
            r=RD+4*(p//3)+p%3; a(f"v_lshlrev_b32 v32, 16, v{r}\nv_and_b32 v33, 0xffff0000, v{r}\nv_pk_add_f32 v[{OWN+2*p}:{OWN+2*p+1}], v[{OWN+2*p}:{OWN+2*p+1}], v[32:33]")
        for r in range(4):
            e=OWN+8*jj+r; x=16+4*jj+r
            a(f"v_cvt_pk_bf16_f32 v35, v{e}, v{e+4}\nv_lshlrev_b32 v33, 16, v{x}\nv_and_b32 v34, 0xffff0000, v{x}\nv_lshlrev_b32 v{e}, 16, v35\nv_and_b32 v{e+4}, 0xffff0000, v35")
            a(f"v_add_f32 v33, v33, v{e}\nv_add_f32 v34, v34, v{e+4}\nv_cvt_pk_bf16_f32 v{x}, v33, v34")
        a(f"buffer_store_dwordx4 v[{16+4*jj}:{19+4*jj}], v5, s[24:27], s36 offen sc1\ns_add_u32 s36, s36, 32768")
```

```python
import sys
from common import *
from k_conv import *
from k_gemm import *
WS_FLG=0x4D00000; WS_NONCE=0x4D80000
LN_LDS=3*ST
W1E=int(os.environ.get("W1E","0"))
W1B=int(os.environ.get("W1B","2"))
import k_gemm
def stamp(a,i=0):
    if STAMP: a("s_memrealtime s[74:75]\ns_waitcnt lgkmcnt(0)\ns_mov_b32 m0, s76\ns_add_u32 s76, s76, 1\nv_writelane_b32 v1, s74, m0")
k_gemm.stamp=stamp
def signal(a, ph, off, ex):
    a(f"s_add_u32 s66, {off}, s65\ns_add_u32 s66, s66, {ph*0x4000}\nv_mov_b32 v12, s64\nv_lshlrev_b32 v13, 10, v2")
    a("s_waitcnt vmcnt(0)\ns_barrier")
    n=f"sg{len(a.l)}"
    a(f"s_cmp_lg_u32 s20, 0\ns_cbranch_scc1 L_{n}\ns_mov_b64 exec, {ex}\nbuffer_store_dword v12, v13, s[32:35], s66 offen sc1\ns_mov_b64 exec, -1\nL_{n}:")
def wait(a, ph, idr, msk):
    n=f"wt{len(a.l)}"
    a(f"s_cmp_lg_u32 s20, 0\ns_cbranch_scc1 L_{n}d")
    a(f"s_add_u32 s66, {idr}, s65\ns_add_u32 s66, s66, {ph*0x4000}\nv_and_b32 v13, {msk}, v3")
    a(f"s_mov_b32 s67, 0x40000\nL_{n}:")
    a("buffer_load_dwordx4 v[8:11], v13, s[32:35], s66 offen sc1\ns_waitcnt vmcnt(0)\nv_xor_b32 v8, s64, v8\nv_xor_b32 v9, s64, v9\nv_xor_b32 v10, s64, v10\nv_xor_b32 v11, s64, v11\nv_or3_b32 v8, v8, v9, v10\nv_or_b32 v12, v8, v11\nv_cmp_ne_u32 vcc, 0, v12")
    a(f"s_cmp_eq_u64 vcc, 0\ns_cbranch_scc1 L_{n}d\ns_sub_u32 s67, s67, 1\ns_cmp_lg_u32 s67, 0\ns_cbranch_scc1 L_{n}\nL_{n}d:\ns_barrier")
def unpack(a,dst,src,n):
    for p in range(n): a(f"v_lshlrev_b32 v{dst+2*p}, 16, v{src+p}\nv_and_b32 v{dst+2*p+1}, 0xffff0000, v{src+p}")

def ln_addr(a):
    a("v_and_b32 v27, 7, v2\nv_lshrrev_b32 v28, 3, v2\ns_lshl_b32 s52, s20, 9\nv_lshlrev_b32 v14, 11, v27\nv_lshl_add_u32 v14, v28, 4, v14\nv_add_u32 v14, s52, v14")
    a("s_lshl_b32 s52, s20, 12\nv_lshlrev_b32 v15, 7, v28\nv_lshl_add_u32 v15, v27, 3, v15\nv_add_u32 v15, s52, v15")
    a(f"s_lshl_b32 s52, s20, 2\nv_lshlrev_b32 v24, 5, v27\nv_add_u32 v24, {LN_LDS}, v24\nv_lshrrev_b32 v25, 5, v2\nv_lshl_add_u32 v25, v25, 4, v24\nv_add_u32 v25, s52, v25")
    a("s_lshl_b32 s52, s20, 16\nv_lshrrev_b32 v26, 2, v28\nv_lshlrev_b32 v26, 13, v26\nv_and_b32 v28, 3, v28\nv_lshl_add_u32 v26, v28, 8, v26\nv_lshl_add_u32 v26, v27, 4, v26\nv_add_u32 v26, s52, v26")
    a("s_lshl_b32 s53, s16, 18\ns_lshr_b32 s52, s17, 1\ns_lshl_b32 s52, s52, 10\ns_add_u32 s53, s53, s52\ns_and_b32 s52, s17, 1\ns_lshl_b32 s52, s52, 7\ns_add_u32 s53, s53, s52\ns_add_u32 s53, s53, s61")
    a("s_lshl_b32 s52, s16, 4\ns_add_u32 s52, s52, s17\ns_lshl_b32 s52, s52, 14")
def lnq(a):
    a("s_load_dwordx2 s[4:5], s[0:1], 0"); ln_addr(a); a("s_waitcnt lgkmcnt(0)"); srd(a,24,4,5,1<<22)
    for i in range(4): a(f"buffer_load_dwordx4 v[{64+4*i}:{67+4*i}], v14, s[24:27], s52 offen offset:{128*i}")
def w1l(a):
    srd(a,28,52,53,3584*2048)
    a(f"s_lshl_b32 s46, s20, 8\ns_add_u32 s46, s46, s2\ns_cmp_ge_u32 s46, 896\ns_cselect_b32 s30, 0, s30")
    a(f"s_and_b32 s22, s2, 31\ns_lshr_b32 s23, s46, 5\ns_mul_i32 s46, s22, {32*7168}\ns_lshl_b32 s47, s23, 8\ns_add_u32 s46, s46, s47")
    a(f"v_mul_u32_u24 v114, {8*7168}, v113\nv_lshl_add_u32 v114, v112, 4, v114")
    for t in range(8): a(f"s_add_u32 s47, s46, {t*7168}\nbuffer_load_dwordx4 v[{80+4*t}:{83+4*t}], v114, s[28:31], s47 offen")
def w2l(a,n):
    srd(a,28,56,57,3584*2048)
    a("s_lshl_b32 s72, s20, 8\ns_add_u32 s72, s72, s2\ns_lshr_b32 s72, s72, 3")
    a("s_lshr_b32 s46, s72, 2\ns_lshl_b32 s46, s46, 18\ns_and_b32 s47, s72, 3\ns_lshl_b32 s47, s47, 12\ns_add_u32 s46, s46, s47\ns_lshl_b32 s47, s58, 8\ns_add_u32 s46, s46, s47")
    a("v_lshlrev_b32 v114, 16, v113\nv_lshl_add_u32 v114, v112, 2, v114")
    a(f"s_cmp_ge_u32 s72, 112\ns_cbranch_scc1 {n}")
    for t in range(8):
        a(f"s_add_u32 s47, s46, {(8*(t&3)+(t>>2))*2048}")
        for hq in range(4): a(f"buffer_load_dword a{144+16*(hq//2)+2*t+(hq&1)}, v114, s[28:31], s47 offen offset:{64*hq}")
def w2s(a):
    a("s_cmp_ge_u32 s72, 112\ns_cbranch_scc1 L_w2se")
    for t in range(32): a(f"v_accvgpr_read_b32 v{16+t}, a{144+t}")
    a(f"s_mul_i32 s46, s58, {2*112*4096}\ns_lshl_b32 s47, s72, 12\ns_add_u32 s46, s46, s47\ns_add_u32 s46, s46, {WS_W2F}\ns_mov_b32 s72, 112")
    for hf in range(2):
        for x in range(4):
            o=48+16*hf+4*x; b=16+16*hf
            for p in range(4): a(f"v_perm_b32 v{o+p}, v{b+2*(2*p+1)+x//2}, v{b+2*(2*p)+x//2}, s{68+(x&1)}")
            a(f"buffer_store_dwordx4 v[{o}:{o+3}], v3, s[32:35], s46 offen offset:{x*1024} sc1")
        a(f"s_add_u32 s46, s46, {112*4096}")
    a("s_waitcnt vmcnt(12)\ns_branch L_w2sf\nL_w2se:\ns_cmp_eq_u32 s60, 0\ns_cbranch_scc1 L_x1k")
    for i in range(4): a(f"buffer_store_dwordx4 v[{64+4*i}:{67+4*i}], v14, s[32:35], s52 offen offset:{128*i} sc1")
    a("s_waitcnt vmcnt(8)\ns_branch L_w2sf\nL_x1k:\ns_waitcnt vmcnt(4)\nL_w2sf:")
def front(a):
    a("s_load_dwordx4 s[4:7], s[0:1], 8\ns_load_dwordx4 s[8:11], s[0:1], 24\ns_load_dwordx2 s[12:13], s[0:1], 40\ns_load_dwordx2 s[14:15], s[0:1], 104\ns_load_dwordx4 s[52:55], s[0:1], 56\ns_load_dwordx2 s[56:57], s[0:1], 72")
    a("v_lshrrev_b32 v4, 6, v0\nv_and_b32 v2, 63, v0\nv_lshlrev_b32 v3, 4, v2\nv_readfirstlane_b32 s20, v4")
    a("s_and_b32 s58, s2, 7\ns_lshr_b32 s59, s2, 3\nv_and_b32 v124, 31, v0\nv_lshrrev_b32 v7, 5, v0")
    a("s_lshl_b32 s18, s59, 17\nv_lshlrev_b32 v9, 14, v7\nv_lshl_add_u32 v9, v124, 3, v9\nv_add_u32 v9, s18, v9\ns_lshl_b32 s19, s58, 8")
    a("v_subrev_u32 v4, 6144, v9\nv_and_b32 v4, 0x7fffffff, v4\nv_lshlrev_b32 v6, 5, v124\ns_lshl_b32 s36, s58, 10")
    a("s_waitcnt lgkmcnt(0)")
    srd(a,40,4,5,1<<22); srd(a,24,6,7,1<<22); srd(a,28,8,9,8192); srd(a,32,14,15,WS_SIZE)
    for r in range(3): a(f"v_add_u32 v5, {r*2048}, v4\nbuffer_load_dwordx2 v[{10+2*r}:{11+2*r}], v5, s[40:43], s19 offen")
    for r in range(8):
        if r%2==0: a(f"v_add_u32 v5, {r*2048}, v9")
        a(f"buffer_load_dwordx2 v[{16+2*r}:{17+2*r}], v5, s[40:43], s19 offen offset:{(r%2)*2048}")
        a(f"buffer_load_dwordx2 v[{32+2*r}:{33+2*r}], v5, s[24:27], s19 offen offset:{(r%2)*2048}")
    a("buffer_load_dwordx4 v[48:51], v6, s[28:31], s36 offen\nbuffer_load_dwordx4 v[52:55], v6, s[28:31], s36 offen offset:16")
    a(f"s_add_u32 s4, s14, {WS_NONCE}\ns_addc_u32 s5, s15, 0\ns_load_dword s64, s[4:5], 0")
    a("s_lshl_b32 s21, s58, 7\ns_lshl_b32 s18, s59, 2\ns_add_u32 s21, s21, s18\ns_lshl_b32 s18, s21, 1\ns_add_u32 s12, s12, s18\ns_addc_u32 s13, s13, 0\ns_load_dwordx2 s[44:45], s[12:13], 0")
    a("s_mov_b32 s68, 0x05040100\ns_mov_b32 s69, 0x07060302\nv_and_b32 v112, 15, v2\nv_lshrrev_b32 v113, 4, v2")
    RL=128
    a("s_cmp_lt_u32 s20, 2\ns_cbranch_scc1 L_w1l\ns_sub_u32 s48, s20, 2")
    srd(a,28,10,11,1<<22)
    a("s_lshl_b32 s46, s48, 1\ns_add_u32 s46, s46, s21\ns_lshl_b32 s46, s46, 12")
    for cc in range(2):
        for it in range(4):
            a(f"buffer_load_dwordx4 v[{RL+16*cc+4*it}:{RL+3+16*cc+4*it}], v3, s[28:31], s46 offen offset:{it*1024}")
            a(f"buffer_load_dword v{RL+32+4*cc+it}, v3, s[28:31], s46 offen offset:{it*1024+16}")
        a("s_add_u32 s46, s46, 4096")
    a("s_waitcnt vmcnt(16)\ns_branch L_kv")
    a("L_w1l:\ns_waitcnt vmcnt(0)")
    WA=64
    a("L_kv:"); stamp(a,1)
    KVL=65536
    a(f"v_mul_u32_u24 v8, 576, v124\nv_lshlrev_b32 v9, 4, v7\nv_sub_u32 v8, v8, v9\nv_add_u32 v8, {KVL+112}, v8")
    unpack(a,56,48,8)
    for c in range(4):
        for r in range(11):
            src=10+2*r+c//2
            a(f"v_lshlrev_b32 v{72+r}, 16, v{src}" if c%2==0 else f"v_and_b32 v{72+r}, 0xffff0000, v{src}")
        for r in range(8):
            src=32+2*r+c//2
            a(f"v_mul_f32 v{84+r}, v{56+4*c+3}, v{72+r}")
            a(f"v_lshlrev_b32 v{92}, 16, v{src}" if c%2==0 else f"v_and_b32 v{92}, 0xffff0000, v{src}")
            a(f"v_fmac_f32 v{84+r}, v{56+4*c+2}, v{73+r}\nv_fmac_f32 v{84+r}, v{56+4*c+1}, v{74+r}\nv_fmac_f32 v{84+r}, v{56+4*c}, v{75+r}")
            a(f"v_mul_f32 v{84+r}, v{84+r}, v92")
        for p in range(4): a(f"v_cvt_pk_bf16_f32 v{96+4*c+p}, v{84+7-2*p}, v{84+6-2*p}")
        a(f"ds_write_b128 v8, v[{96+4*c}:{99+4*c}] offset:{c*144}")
    a(f"s_mul_i32 s47, s20, {UR_STRIDE}\nv_mov_b32 v70, 0\nv_mov_b32 v71, 0\nv_lshlrev_b32 v7, 3, v2\nv_add_u32 v7, s47, v7\nds_write_b64 v7, v[70:71] offset:4096")
    a("s_waitcnt lgkmcnt(0)\ns_barrier")
    a(f"s_mul_i32 s64, s64, 0x9e3779b1\ns_add_u32 s64, s64, 0x7f4a7c15\ns_mov_b32 s65, {WS_FLG}")
    a("s_cmp_ge_u32 s20, 2\ns_cbranch_scc1 L_w1s")
    a(f"v_lshrrev_b32 v8, 3, v0\nv_mul_u32_u24 v8, 144, v8\nv_and_b32 v9, 7, v0\nv_lshl_add_u32 v8, v9, 4, v8\nv_add_u32 v8, {KVL}, v8\nv_lshlrev_b32 v9, 4, v0")
    a(f"s_sub_u32 s18, 31, s59\ns_lshl_b32 s18, s18, 17\ns_lshl_b32 s19, s58, 14\ns_add_u32 s18, s18, s19\ns_add_u32 s18, s18, {WS_UR}")
    for it in range(8): a(f"ds_read_b128 v[{16+4*it}:{19+4*it}], v8 offset:{it*16*144}")
    for it in range(8):
        a(f"s_waitcnt lgkmcnt({7-it})\nbuffer_store_dwordx4 v[{16+4*it}:{19+4*it}], v9, s[32:35], s18 offen offset:{(it&1)*2048} sc1")
        if it&1: a("s_add_u32 s18, s18, 4096")
    a("s_lshl_b32 s73, s58, 8\ns_lshl_b32 s72, s59, 2\ns_add_u32 s72, s72, s73")
    signal(a,0,"s72",1); stamp(a)
    wait(a,0,"s73",112); stamp(a)
    a("s_branch L_cv\nL_w1s:\ns_barrier")
    a(f"s_mul_i32 s48, s48, {2*HP_STRIDE}\ns_add_u32 s48, s48, {HP0}\nv_add_u32 v9, s48, v3\ns_waitcnt vmcnt(0)")
    for i in range(7): a(f"v_mov_b32 v{116+i}, 0")
    for cc in range(2):
        for it in range(4):
            b=RL+16*cc+4*it; o=56+4*it
            a(f"ds_write_b128 v9, v[{b}:{b+3}] offset:{cc*HP_STRIDE+32+it*1024}")
            a(f"v_alignbit_b32 v{o}, v{b+1}, v{b}, 16\nv_alignbit_b32 v{o+1}, v{b+2}, v{b+1}, 16\nv_alignbit_b32 v{o+2}, v{b+3}, v{b+2}, 16\nv_alignbit_b32 v{o+3}, v{RL+32+4*cc+it}, v{b+3}, 16")
            a(f"ds_write_b128 v9, v[{o}:{o+3}] offset:{cc*HP_STRIDE+HP_C1+32+it*1024}")
        h=cc*HP_STRIDE
        a(f"v_lshlrev_b32 v123, 16, v{RL+16*cc}\ns_mov_b64 exec, 1\nds_write_b128 v9, v[116:119] offset:{h}\nds_write_b128 v9, v[116:119] offset:{h+16}\nds_write_b128 v9, v[116:119] offset:{h+HP_C1}\nds_write_b128 v9, v[120:123] offset:{h+HP_C1+16}\ns_mov_b64 exec, -1\ns_waitcnt lgkmcnt(0)")
    a("s_lshl_b32 s47, s20, 8\ns_add_u32 s47, s47, s2\ns_cmp_ge_u32 s47, 540\ns_cbranch_scc1 L_wj")
    srd(a,28,54,55,7168)
    a(f"v_lshlrev_b32 v8, 2, v2\ns_lshl_b32 s47, s2, 8\nbuffer_load_dword v9, v8, s[28:31], s47 offen\nv_and_b32 v10, 3, v2\nv_lshlrev_b32 v10, 7, v10\nv_and_b32 v11, 60, v2\nv_add_u32 v10, v10, v11\ns_lshl_b32 s47, s2, 9\ns_add_u32 s47, s47, {WS_B1F}")
    a("s_waitcnt vmcnt(0)\nv_lshlrev_b32 v11, 16, v9\nv_and_b32 v12, 0xffff0000, v9\nbuffer_store_dword v11, v10, s[32:35], s47 offen sc1\nbuffer_store_dword v12, v10, s[32:35], s47 offen offset:64 sc1")
    a("L_wj:")
    if W1E: w1l(a)
    a("s_barrier")
    a("L_cv:")
    a(f"s_add_u32 s19, s20, s21\ns_lshl_b32 s19, s19, 7\ns_add_u32 s19, s19, {WS_UR}\ns_mul_i32 s18, s20, {UR_STRIDE}")
    a("v_lshrrev_b32 v4, 3, v2\nv_lshlrev_b32 v4, 17, v4\nv_and_b32 v5, 7, v2\nv_lshl_add_u32 v4, v5, 4, v4")
    for it in range(4): a(f"s_add_u32 m0, s18, {it*1024}\ns_add_u32 s36, s19, {it*(8<<17)}\nbuffer_load_dwordx4 v4, s[32:35], s36 offen sc1 lds")
    if W1E: a("s_cmp_ge_u32 s20, 2\ns_cbranch_scc1 L_e1"); w1l(a); a("L_e1:")
    else: w1l(a)
    lnq(a)
    a(f"s_mul_i32 s47, s20, {UR_STRIDE}\ns_mul_i32 s48, s20, {HP_STRIDE}\ns_add_u32 s48, s48, {HP0}")
    a("s_lshr_b32 s49, s20, 1\ns_cmp_eq_u32 s49, 0\ns_cselect_b32 s49, s44, s45\ns_lshl_b32 s50, s49, 16\ns_and_b32 s49, s49, 0xffff0000\ns_bitcmp1_b32 s20, 0\ns_cselect_b32 s49, s49, s50")
    a("v_add_u32 v5, 1, v112\nv_lshrrev_b32 v5, 1, v5\nv_lshl_add_u32 v5, v113, 2, v5\nv_lshlrev_b32 v5, 2, v5")
    a(f"v_and_b32 v6, 1, v112\nv_xor_b32 v6, 1, v6\nv_mul_u32_u24 v6, {HP_C1}, v6\nv_add3_u32 v5, v5, v6, s48")
    for q in range(1,4): a(f"v_add_u32 v{5+q}, {1024*q}, v5")
    a(f"v_lshlrev_b32 v9, 5, v112\nv_sub_u32 v9, {2*2032-512*7}, v9\nv_lshl_add_u32 v9, v113, 4, v9\nv_add_u32 v9, s47, v9")
    for i in range(32): a(f"v_accvgpr_write_b32 a{i}, 0")
    a("s_waitcnt vmcnt(12)"+("\ns_cmp_lt_u32 s20, 2\ns_cbranch_scc1 L_e2\ns_waitcnt vmcnt(4)\nL_e2:" if W1E else "")); stamp(a,3)
    FA=[128,192]; FB=[160,224]
    def rd(rho,buf):
        L=[]
        for x in range(8):
            L.append(f"ds_read_b128 v[{FB[buf]+4*x}:{FB[buf]+4*x+3}], v9 offset:{512*(7-x)+64*rho}")
            o=(x%2)*128+16*rho
            L.append(f"ds_read2_b32 v[{FA[buf]+4*x}:{FA[buf]+4*x+1}], v{5+x//2} offset0:{o} offset1:{o+1}")
            L.append(f"ds_read2_b32 v[{FA[buf]+4*x+2}:{FA[buf]+4*x+3}], v{5+x//2} offset0:{o+2} offset1:{o+3}")
        return L
    for s in rd(0,0): a(s)
    a("s_mov_b32 s51, 4\nL_cvl:")
    for rho in range(2):
        buf=rho&1; a("s_waitcnt lgkmcnt(0)"); nxt=rd(rho+1,buf^1); n=0
        for aa in range(8):
            for b in range(8-aa):
                J=aa+b
                a(f"{MF} a[{4*J}:{4*J+3}], v[{FA[buf]+4*aa}:{FA[buf]+4*aa+3}], v[{FB[buf]+4*b}:{FB[buf]+4*b+3}], a[{4*J}:{4*J+3}]")
                if n<len(nxt): a(nxt[n]); n+=1
                elif rho==1 and n<len(nxt)+5: a(f"v_add_u32 v{5+n-len(nxt)}, 128, v{5+n-len(nxt)}"); n+=1
    a("s_sub_u32 s51, s51, 1\ns_cmp_lg_u32 s51, 0\ns_cbranch_scc1 L_cvl\ns_waitcnt lgkmcnt(0)")
    if W1B==2: a("s_waitcnt vmcnt(4)"); w1s(a)
    a(f"v_lshlrev_b32 v4, 5, v112\nv_lshl_add_u32 v4, v113, 3, v4\nv_add_u32 v5, s48, v4\nv_sub_u32 v4, {2*2044-512*7}, v4\nv_add_u32 v4, s47, v4")
    for J in range(8): a(f"ds_read_b64 v[{128+2*J}:{129+2*J}], v4 offset:{512*(7-J)}")
    for J in range(8):
        k0=128+2*J
        for r in range(4): a(f"v_accvgpr_read_b32 v{148+r}, a{4*J+r}")
        a(f"s_waitcnt lgkmcnt(7)\nv_and_b32 v144, 0xffff0000, v{k0+1}\nv_lshlrev_b32 v145, 16, v{k0+1}\nv_and_b32 v146, 0xffff0000, v{k0}\nv_lshlrev_b32 v147, 16, v{k0}")
        for r in range(4): a(f"v_fmac_f32 v{148+r}, s49, v{144+r}")
        a(f"v_cvt_pk_bf16_f32 v{152+2*J}, v148, v149\nv_cvt_pk_bf16_f32 v{153+2*J}, v150, v151\nds_write_b64 v5, v[{152+2*J}:{153+2*J}] offset:{512*J}")
    a(f"v_lshlrev_b32 v6, 2, v0\nv_add_u32 v6, {HP0}, v6\ns_waitcnt lgkmcnt(0)\ns_barrier")
    for it in range(4):
        for c in range(4): a(f"ds_read_b32 v{168+4*it+c}, v6 offset:{c*HP_STRIDE+it*1024}")
    a("v_lshrrev_b32 v7, 2, v0\nv_lshlrev_b32 v7, 14, v7\nv_and_b32 v8, 3, v0\nv_lshl_add_u32 v7, v8, 4, v7\ns_lshl_b32 s50, s21, 4")
    for it in range(4):
        b=168+4*it; o=184+4*it
        a(f"s_waitcnt lgkmcnt({12-4*it})\nv_perm_b32 v{o}, v{b+1}, v{b}, s68\nv_perm_b32 v{o+1}, v{b+3}, v{b+2}, s68\nv_perm_b32 v{o+2}, v{b+1}, v{b}, s69\nv_perm_b32 v{o+3}, v{b+3}, v{b+2}, s69")
        a(f"buffer_store_dwordx4 v[{o}:{o+3}], v7, s[32:35], s50 offen sc1\ns_add_u32 s50, s50, {64*16384}")
def w1s(a):
    a("s_lshl_b32 s46, s20, 8\ns_add_u32 s46, s46, s2\ns_cmp_ge_u32 s46, 896\ns_cbranch_scc1 L_we")
    a(f"s_mul_i32 s46, s22, {14*1024}\ns_add_u32 s46, s46, {WS_W1F}\ns_lshl_b32 s23, s23, 3")
    for x in range(8):
        o=200+4*x; b=80
        a(f"s_add_u32 s36, s23, {x}\ns_mul_i32 s37, s36, 4682\ns_lshr_b32 s37, s37, 16\ns_mul_i32 s37, s37, {32*14-14}\ns_add_u32 s36, s36, s37\ns_lshl_b32 s36, s36, 10\ns_add_u32 s36, s36, s46")
        for p in range(4): a(f"v_perm_b32 v{o+p}, v{b+4*(2*p+1)+x//2}, v{b+4*(2*p)+x//2}, s{68+(x&1)}")
        a(f"buffer_store_dwordx4 v[{o}:{o+3}], v3, s[32:35], s36 offen sc1")
    a("L_we:")
X=32
def stats(a, off):
    a(f"v_pk_add_f32 v[28:29], v[{X}:{X+1}], v[{X+2}:{X+3}]\nv_pk_mul_f32 v[30:31], v[{X}:{X+1}], v[{X}:{X+1}]")
    for e in range(2,32,2):
        if e>2: a(f"v_pk_add_f32 v[28:29], v[28:29], v[{X+e}:{X+e+1}]")
        a(f"v_pk_fma_f32 v[30:31], v[{X+e}:{X+e+1}], v[{X+e}:{X+e+1}], v[30:31]")
    a("v_add_f32 v28, v28, v29\nv_add_f32 v29, v30, v31")
    a("s_nop 1\nv_permlane32_swap_b32 v28, v29\ns_nop 1\nv_add_f32 v28, v28, v29\nv_mov_b32 v29, v28\ns_nop 1\nv_permlane16_swap_b32 v28, v29\ns_nop 1\nv_add_f32 v28, v28, v29\ns_nop 1")
    a("v_add_f32_dpp v28, v28, v28 row_ror:8 row_mask:0xf bank_mask:0xf")
    a(f"ds_write_b32 v25, v28 offset:{off}\ns_waitcnt lgkmcnt(0)\ns_barrier\nds_read_b128 v[132:135], v24 offset:{off}\nds_read_b128 v[136:139], v24 offset:{off+16}")
    a("s_mov_b32 s54, 0x3a800000\ns_mov_b32 s55, 0x3727c5ac\ns_waitcnt lgkmcnt(0)")
    a("v_add_f32 v132, v132, v133\nv_add_f32 v134, v134, v135\nv_add_f32 v136, v136, v137\nv_add_f32 v138, v138, v139\nv_add_f32 v132, v132, v134\nv_add_f32 v136, v136, v138")
    a("v_mul_f32 v132, s54, v132\nv_mul_f32 v136, s54, v136\nv_fma_f32 v136, -v132, v132, v136\nv_max_f32 v136, 0, v136\nv_add_f32 v136, s55, v136\nv_rsq_f32 v136, v136\ns_nop 0\nv_mul_f32 v132, -v132, v136\nv_mov_b32 v137, v136\nv_mov_b32 v133, v132")
def g1_pre(a):
    g1_setup(a)
    a("s_mov_b32 s44, 0\ns_and_b32 s21, s20, 1\ns_lshr_b32 s22, s20, 1")
    a(f"v_lshrrev_b32 v4, 4, v2\nv_lshlrev_b32 v4, 4, v4\ns_mul_i32 s23, s17, 896\ns_mul_i32 s24, s22, 448\ns_add_u32 s23, s23, s24\ns_add_u32 s23, s23, {WS_B1F}")
    for i in range(7): a(f"buffer_load_dwordx4 v[{104+4*i}:{107+4*i}], v4, s[32:35], s23 offen offset:{64*i}")
def g1_w(a):
    a(f"s_add_u32 s43, s43, {3*28672}\ns_cmp_eq_u32 s20, 0\ns_cbranch_scc1 L_gw\ns_sub_u32 s46, s20, 1\ns_mul_i32 s47, s46, 28672\ns_mul_i32 s48, s17, 458752\ns_add_u32 s47, s47, s48\ns_add_u32 s47, s47, {WS_W1F}\ns_mul_i32 s46, s46, {ST}")
    for c in range(7):
        a(f"s_add_u32 m0, s46, {16384+c*4096}\ns_add_u32 s48, s47, {c*4096}")
        for i in range(4): a(f"buffer_load_dwordx4 v3, s[32:35], s48 offen offset:{i*1024} lds")
    a("L_gw:")
def flag8(a,ph,n,cond):
    a(f"{cond}\ns_cbranch_scc1 {n}\ns_add_u32 s66, s70, {WS_FLG+ph*0x4000}\nv_mov_b32 v12, s64\nv_lshlrev_b32 v13, 10, v2\ns_mov_b64 exec, 0xff\nbuffer_store_dword v12, v13, s[32:35], s66 offen sc1\ns_mov_b64 exec, -1\n{n}:")
def main():
    a=Asm()
    a("s_cmp_ge_u32 s2, 256\ns_cbranch_scc1 L_end\ns_mov_b32 s76, 0"); stamp(a)
    tilemap(a,4,8); a("s_lshl_b32 s70, s16, 4\ns_add_u32 s70, s70, s17\ns_lshl_b32 s70, s70, 2\ns_and_b32 s77, s2, 7\ns_lshl_b32 s77, s77, 10\ns_lshl_b32 s79, s16, 8\ns_lshl_b32 s78, s17, 2\ns_add_u32 s78, s78, s79\ns_and_b32 s71, s78, 0xffe0")
    a(f"s_mov_b32 s60, 0\ns_mov_b32 s61, {WS_XN[0]}\ns_mov_b32 s62, {WS_UR}\ns_mov_b32 s63, {WS_H[0]}")
    front(a)
    if W1B==1: a("s_waitcnt vmcnt(8)"); w1s(a)
    stamp(a)
    signal(a,1,"s70","0xff"); stamp(a)
    a("s_cmp_eq_u32 s20, 0\ns_cbranch_scc1 L_w2le"); w2l(a,"L_w2le"); a("L_w2le:"); unpack(a,X,64,16); stats(a,0)
    for i in range(64): a(f"v_accvgpr_write_b32 a{i}, 0")
    a("s_waitcnt vmcnt(32)"); wait(a,1,"s77",1008); stamp(a)
    for i in range(4):
        for hh in range(2): a(f"buffer_load_dwordx2 v[{80+4*i+2*hh}:{81+4*i+2*hh}], v15, s[32:35], s52 offen offset:{i*1024+hh*64} sc1")
    a("s_cmp_lg_u32 s20, 0\ns_cbranch_scc1 L_w2m"); w2l(a,"L_w2m"); g1_pre(a)
    a("s_waitcnt vmcnt(39)\ns_branch L_w2n\nL_w2m:"); g1_pre(a); a("s_waitcnt vmcnt(7)\nL_w2n:")
    for p in range(16): a(f"v_accvgpr_write_b32 a{128+p}, v{80+p}")
    a("L_lnc:"); stamp(a)
    for p in range(16):
        a(f"v_lshlrev_b32 v28, 16, v{80+p}\nv_and_b32 v29, 0xffff0000, v{80+p}\nv_pk_fma_f32 v[30:31], v[{X+2*p}:{X+2*p+1}], v[136:137], v[132:133]\nv_pk_fma_f32 v[{X+2*p}:{X+2*p+1}], v[30:31], v[28:29], v[{X+2*p}:{X+2*p+1}]\nv_cvt_pk_bf16_f32 v{64+p}, v{X+2*p}, v{X+2*p+1}")
    a("s_add_u32 s52, s52, s62")
    unpack(a,X,64,16)
    stats(a,256)
    for i in range(4):
        for e in range(8*i,8*i+8,2): a(f"v_pk_fma_f32 v[{X+e}:{X+e+1}], v[{X+e}:{X+e+1}], v[136:137], v[132:133]")
        for p in range(4*i,4*i+4): a(f"v_cvt_pk_bf16_f32 v{80+p}, v{X+2*p}, v{X+2*p+1}")
        a(f"buffer_store_dwordx4 v[{80+4*i}:{83+4*i}], v26, s[32:35], s53 offen sc1\ns_add_u32 s53, s53, 16384")
    for p in range(16): a(f"v_accvgpr_write_b32 a{240+p}, v{64+p}")
    a("s_waitcnt vmcnt(4)")
    for i in range(7):
        for j in range(4):
            for r in (0,2): a(f"v_pk_mov_b32 v[{132+4*(4*i+j)+r}:{133+4*(4*i+j)+r}], v[{104+4*i+r}:{105+4*i+r}], v[{104+4*i+r}:{105+4*i+r}] op_sel:[0,1]")
    stamp(a); signal(a,2,"s78",1); stamp(a); g1_w(a)
    wait(a,2,"s79",48); stamp(a)
    g1_body(a,"g1",pre=lambda: w2s(a), mega=lambda: a(f"s_or_b32 s66, s60, s20\ns_cmp_lg_u32 s66, 0\ns_cbranch_scc1 L_w2f\ns_add_u32 s66, s70, {WS_FLG+8*0x4000}\nv_mov_b32 v12, s64\nv_lshlrev_b32 v13, 10, v2\ns_mov_b64 exec, 0xff\nbuffer_store_dword v12, v13, s[32:35], s66 offen sc1\ns_mov_b64 exec, -1\nL_w2f:"))
    a("s_cmp_lg_u32 s60, 0\ns_cbranch_scc1 L_w2g"); wait(a,8,"s77",1008); a("L_w2g:")
    stamp(a); signal(a,3,"s78",1); stamp(a)
    g2_body(a,"g2",mega=lambda: (wait(a,3,"s71",16), stamp(a)))
    stamp(a)
    a("s_branch L_fin\nL_g2e:"); stamp(a)
    a(f"s_mov_b32 s60, 1\ns_mov_b32 s61, {WS_XN[1]}\ns_mov_b32 s63, {WS_H[1]}")
    g1_pre(a); ln_addr(a)
    for p in range(16): a(f"v_accvgpr_read_b32 v{80+p}, a{128+p}\nv_accvgpr_read_b32 v{64+p}, a{240+p}")
    unpack(a,X,64,16)
    signal(a,4,"s78",1); stamp(a)
    a(f"s_or_b32 s54, s2, s20\ns_cmp_lg_u32 s54, 0\ns_cbranch_scc1 L_nn\nv_mov_b32 v12, s64\nv_mov_b32 v13, 0\ns_mov_b32 s54, {WS_NONCE}\ns_mov_b64 exec, 1\nbuffer_store_dword v12, v13, s[32:35], s54 offen sc1\ns_mov_b64 exec, -1\nL_nn:")
    wait(a,4,"s79",48); stamp(a)
    a(f"s_add_u32 s54, s52, {WS_UR}\ns_add_u32 s55, s52, {WS_Y}\ns_add_u32 s65, s65, {3*0x4000}")
    for i in range(4):
        for k in range(2): a(f"buffer_load_dwordx4 v[{140+16*k+4*i}:{143+16*k+4*i}], v14, s[32:35], s{54+k} offen offset:{128*i} sc1")
    for i in range(64): a(f"v_accvgpr_write_b32 a{i}, 0")
    for p in range(16):
        if p%4==0: a(f"s_waitcnt vmcnt({6-p//2})")
        a(f"v_lshlrev_b32 v28, 16, v{140+p}\nv_and_b32 v29, 0xffff0000, v{140+p}\nv_lshlrev_b32 v30, 16, v{156+p}\nv_and_b32 v31, 0xffff0000, v{156+p}\nv_pk_add_f32 v[28:29], v[28:29], v[30:31]")
        a(f"v_pk_add_f32 v[28:29], v[28:29], v[{X+2*p}:{X+2*p+1}]\nv_cvt_pk_bf16_f32 v30, v28, v29\nv_lshlrev_b32 v{X+2*p}, 16, v30\nv_and_b32 v{X+2*p+1}, 0xffff0000, v30")
    stats(a,0)
    a("s_branch L_lnc\nL_fin:")
    if STAMP:
        a("s_waitcnt vmcnt(0)"); stamp(a)
        a(f"v_lshlrev_b32 v2, 2, v0\ns_lshl_b32 s74, s2, 10\ns_add_u32 s74, s74, {WS_DBG}\nv_writelane_b32 v1, s76, 63\nbuffer_store_dword v1, v2, s[32:35], s74 offen")
    a("L_end:\ns_endpgm")
    N="interleave_layers__ssm_conv_h3__dense_activation_squared_relu__prompt"
    hdr="".join(l for l in open(f"cdna_kernels/{N}.s.ref").readlines()[:15])
    out=sys.argv[1] if len(sys.argv)>1 else f"cdna_kernels/{N}.s"
    t=assemble_file([(N+"_kernel",256,256,LN_LDS+1024)],[(N+"_kernel",a.text(),kernel_desc(N+"_kernel",512,256))])
    if not os.environ.get("LIST"): t=t.replace(f"kernel={N}_kernel ","")
    open(out,"w").write(hdr+t)
main()
```

```python
import sys
from common import *
from k_conv import *
from k_gemm import *
WS_FLG=0x4D00000; WS_NONCE=0x4D80000
LN_LDS=3*ST
W1E=int(os.environ.get("W1E","0"))
HL=int(os.environ.get("HL","1"))
W1B=int(os.environ.get("W1B","2"))
import k_gemm
def stamp(a,i=0):
    if STAMP: a("s_memrealtime s[74:75]\ns_waitcnt lgkmcnt(0)\ns_mov_b32 m0, s76\ns_add_u32 s76, s76, 1\nv_writelane_b32 v1, s74, m0")
k_gemm.stamp=stamp
def signal(a, ph, off, ex):
    a(f"s_add_u32 s66, {off}, s65\ns_add_u32 s66, s66, {ph*0x4000}\nv_mov_b32 v12, s64\nv_lshlrev_b32 v13, 10, v2")
    a("s_waitcnt vmcnt(0)\ns_barrier")
    n=f"sg{len(a.l)}"
    a(f"s_cmp_lg_u32 s20, 0\ns_cbranch_scc1 L_{n}\ns_mov_b64 exec, {ex}\nbuffer_store_dword v12, v13, s[32:35], s66 offen sc1\ns_mov_b64 exec, -1\nL_{n}:")
def wait(a, ph, idr, msk):
    n=f"wt{len(a.l)}"
    a(f"s_cmp_lg_u32 s20, 0\ns_cbranch_scc1 L_{n}d")
    a(f"s_add_u32 s66, {idr}, s65\ns_add_u32 s66, s66, {ph*0x4000}\nv_and_b32 v13, {msk}, v3")
    a(f"s_mov_b32 s67, 0x40000\nL_{n}:")
    a("buffer_load_dwordx4 v[8:11], v13, s[32:35], s66 offen sc1\ns_waitcnt vmcnt(0)\nv_xor_b32 v8, s64, v8\nv_xor_b32 v9, s64, v9\nv_xor_b32 v10, s64, v10\nv_xor_b32 v11, s64, v11\nv_or3_b32 v8, v8, v9, v10\nv_or_b32 v12, v8, v11\nv_cmp_ne_u32 vcc, 0, v12")
    a(f"s_cmp_eq_u64 vcc, 0\ns_cbranch_scc1 L_{n}d\ns_sub_u32 s67, s67, 1\ns_cmp_lg_u32 s67, 0\ns_cbranch_scc1 L_{n}\nL_{n}d:\ns_barrier")
def unpack(a,dst,src,n):
    for p in range(n): a(f"v_lshlrev_b32 v{dst+2*p}, 16, v{src+p}\nv_and_b32 v{dst+2*p+1}, 0xffff0000, v{src+p}")

def ln_addr(a):
    a("v_and_b32 v27, 7, v2\nv_lshrrev_b32 v28, 3, v2\ns_lshl_b32 s52, s20, 9\nv_lshlrev_b32 v14, 11, v27\nv_lshl_add_u32 v14, v28, 4, v14\nv_add_u32 v14, s52, v14")
    a("s_lshl_b32 s52, s20, 12\nv_lshlrev_b32 v15, 7, v28\nv_lshl_add_u32 v15, v27, 3, v15\nv_add_u32 v15, s52, v15")
    a(f"s_lshl_b32 s52, s20, 2\nv_lshlrev_b32 v24, 5, v27\nv_add_u32 v24, {LN_LDS}, v24\nv_lshrrev_b32 v25, 5, v2\nv_lshl_add_u32 v25, v25, 4, v24\nv_add_u32 v25, s52, v25")
    a("s_lshl_b32 s52, s20, 16\nv_lshrrev_b32 v26, 2, v28\nv_lshlrev_b32 v26, 13, v26\nv_and_b32 v28, 3, v28\nv_lshl_add_u32 v26, v28, 8, v26\nv_lshl_add_u32 v26, v27, 4, v26\nv_add_u32 v26, s52, v26")
    a("s_lshl_b32 s53, s16, 18\ns_lshr_b32 s52, s17, 1\ns_lshl_b32 s52, s52, 10\ns_add_u32 s53, s53, s52\ns_and_b32 s52, s17, 1\ns_lshl_b32 s52, s52, 7\ns_add_u32 s53, s53, s52\ns_add_u32 s53, s53, s61")
    a("s_lshl_b32 s52, s16, 4\ns_add_u32 s52, s52, s17\ns_lshl_b32 s52, s52, 14")
def lnq(a):
    a("s_load_dwordx2 s[4:5], s[0:1], 0"); ln_addr(a); a("s_waitcnt lgkmcnt(0)"); srd(a,24,4,5,1<<22)
    for i in range(4): a(f"buffer_load_dwordx4 v[{64+4*i}:{67+4*i}], v14, s[24:27], s52 offen offset:{128*i}")
def w1l(a):
    srd(a,28,52,53,3584*2048)
    a(f"s_lshl_b32 s46, s20, 8\ns_add_u32 s46, s46, s2\ns_cmp_ge_u32 s46, 896\ns_cselect_b32 s30, 0, s30")
    a(f"s_and_b32 s22, s2, 31\ns_lshr_b32 s23, s46, 5\ns_mul_i32 s46, s22, {32*7168}\ns_lshl_b32 s47, s23, 8\ns_add_u32 s46, s46, s47")
    a(f"v_mul_u32_u24 v114, {8*7168}, v113\nv_lshl_add_u32 v114, v112, 4, v114")
    for t in range(8): a(f"s_add_u32 s47, s46, {t*7168}\nbuffer_load_dwordx4 v[{80+4*t}:{83+4*t}], v114, s[28:31], s47 offen")
def w2l(a,n):
    srd(a,28,56,57,3584*2048)
    a("s_lshl_b32 s72, s20, 8\ns_add_u32 s72, s72, s2\ns_lshr_b32 s72, s72, 3")
    a("s_lshr_b32 s46, s72, 2\ns_lshl_b32 s46, s46, 18\ns_and_b32 s47, s72, 3\ns_lshl_b32 s47, s47, 12\ns_add_u32 s46, s46, s47\ns_lshl_b32 s47, s58, 8\ns_add_u32 s46, s46, s47")
    a("v_lshlrev_b32 v114, 16, v113\nv_lshl_add_u32 v114, v112, 2, v114")
    a(f"s_cmp_ge_u32 s72, 112\ns_cbranch_scc1 {n}")
    for t in range(8):
        a(f"s_add_u32 s47, s46, {(8*(t&3)+(t>>2))*2048}")
        for hq in range(4): a(f"buffer_load_dword a{144+16*(hq//2)+2*t+(hq&1)}, v114, s[28:31], s47 offen offset:{64*hq}")
def w2s(a):
    a("s_cmp_ge_u32 s72, 112\ns_cbranch_scc1 L_w2se")
    for t in range(32): a(f"v_accvgpr_read_b32 v{16+t}, a{144+t}")
    a(f"s_mul_i32 s46, s58, {2*112*4096}\ns_lshl_b32 s47, s72, 12\ns_add_u32 s46, s46, s47\ns_add_u32 s46, s46, {WS_W2F}\ns_mov_b32 s72, 112")
    for hf in range(2):
        for x in range(4):
            o=48+16*hf+4*x; b=16+16*hf
            for p in range(4): a(f"v_perm_b32 v{o+p}, v{b+2*(2*p+1)+x//2}, v{b+2*(2*p)+x//2}, s{68+(x&1)}")
            a(f"buffer_store_dwordx4 v[{o}:{o+3}], v3, s[32:35], s46 offen offset:{x*1024} sc1")
        a(f"s_add_u32 s46, s46, {112*4096}")
    a("s_waitcnt vmcnt(12)\ns_branch L_w2sf\nL_w2se:\ns_cmp_eq_u32 s60, 0\ns_cbranch_scc1 L_x1k")
    for i in range(4): a(f"buffer_store_dwordx4 v[{64+4*i}:{67+4*i}], v14, s[32:35], s52 offen offset:{128*i} sc1")
    a("s_waitcnt vmcnt(8)\ns_branch L_w2sf\nL_x1k:\ns_waitcnt vmcnt(4)\nL_w2sf:")
def front(a):
    a("s_load_dwordx4 s[4:7], s[0:1], 8\ns_load_dwordx4 s[8:11], s[0:1], 24\ns_load_dwordx2 s[12:13], s[0:1], 40\ns_load_dwordx2 s[14:15], s[0:1], 104\ns_load_dwordx4 s[52:55], s[0:1], 56\ns_load_dwordx2 s[56:57], s[0:1], 72")
    a("v_lshrrev_b32 v4, 6, v0\nv_and_b32 v2, 63, v0\nv_lshlrev_b32 v3, 4, v2\nv_readfirstlane_b32 s20, v4")
    a("s_and_b32 s58, s2, 7\ns_lshr_b32 s59, s2, 3\nv_and_b32 v124, 31, v0\nv_lshrrev_b32 v7, 5, v0")
    a("s_lshl_b32 s18, s59, 17\nv_lshlrev_b32 v9, 14, v7\nv_lshl_add_u32 v9, v124, 3, v9\nv_add_u32 v9, s18, v9\ns_lshl_b32 s19, s58, 8")
    a("v_subrev_u32 v4, 6144, v9\nv_and_b32 v4, 0x7fffffff, v4\nv_lshlrev_b32 v6, 5, v124\ns_lshl_b32 s36, s58, 10")
    a("s_waitcnt lgkmcnt(0)")
    srd(a,40,4,5,1<<22); srd(a,24,6,7,1<<22); srd(a,28,8,9,8192); srd(a,32,14,15,WS_SIZE)
    for r in range(3): a(f"v_add_u32 v5, {r*2048}, v4\nbuffer_load_dwordx2 v[{10+2*r}:{11+2*r}], v5, s[40:43], s19 offen")
    for r in range(8):
        if r%2==0: a(f"v_add_u32 v5, {r*2048}, v9")
        a(f"buffer_load_dwordx2 v[{16+2*r}:{17+2*r}], v5, s[40:43], s19 offen offset:{(r%2)*2048}")
        a(f"buffer_load_dwordx2 v[{32+2*r}:{33+2*r}], v5, s[24:27], s19 offen offset:{(r%2)*2048}")
    a("buffer_load_dwordx4 v[48:51], v6, s[28:31], s36 offen\nbuffer_load_dwordx4 v[52:55], v6, s[28:31], s36 offen offset:16")
    a(f"s_add_u32 s4, s14, {WS_NONCE}\ns_addc_u32 s5, s15, 0\ns_load_dword s64, s[4:5], 0")
    a("s_lshl_b32 s21, s58, 7\ns_lshl_b32 s18, s59, 2\ns_add_u32 s21, s21, s18\ns_lshl_b32 s18, s21, 1\ns_add_u32 s12, s12, s18\ns_addc_u32 s13, s13, 0\ns_load_dwordx2 s[44:45], s[12:13], 0")
    a("s_mov_b32 s68, 0x05040100\ns_mov_b32 s69, 0x07060302\nv_and_b32 v112, 15, v2\nv_lshrrev_b32 v113, 4, v2")
    RL=128
    a("s_cmp_lt_u32 s20, 2\ns_cbranch_scc1 L_w1l\ns_sub_u32 s48, s20, 2")
    if HL: a("s_waitcnt vmcnt(0)")
    srd(a,28,10,11,1<<22)
    a("s_lshl_b32 s46, s48, 1\ns_add_u32 s46, s46, s21\ns_lshl_b32 s46, s46, 12")
    for cc in range(2):
        for it in range(4):
            a(f"buffer_load_dwordx4 v[{RL+16*cc+4*it}:{RL+3+16*cc+4*it}], v3, s[28:31], s46 offen offset:{it*1024}")
            a(f"buffer_load_dword v{RL+32+4*cc+it}, v3, s[28:31], s46 offen offset:{it*1024+16}")
        a("s_add_u32 s46, s46, 4096")
    a("s_waitcnt vmcnt(16)\ns_branch L_kv")
    a("L_w1l:\ns_waitcnt vmcnt(0)")
    WA=64
    a("L_kv:"); stamp(a,1)
    KVL=65536
    a(f"v_mul_u32_u24 v8, 576, v124\nv_lshlrev_b32 v9, 4, v7\nv_sub_u32 v8, v8, v9\nv_add_u32 v8, {KVL+112}, v8")
    unpack(a,56,48,8)
    for c in range(4):
        for r in range(11):
            src=10+2*r+c//2
            a(f"v_lshlrev_b32 v{72+r}, 16, v{src}" if c%2==0 else f"v_and_b32 v{72+r}, 0xffff0000, v{src}")
        for r in range(8):
            src=32+2*r+c//2
            a(f"v_mul_f32 v{84+r}, v{56+4*c+3}, v{72+r}")
            a(f"v_lshlrev_b32 v{92}, 16, v{src}" if c%2==0 else f"v_and_b32 v{92}, 0xffff0000, v{src}")
            a(f"v_fmac_f32 v{84+r}, v{56+4*c+2}, v{73+r}\nv_fmac_f32 v{84+r}, v{56+4*c+1}, v{74+r}\nv_fmac_f32 v{84+r}, v{56+4*c}, v{75+r}")
            a(f"v_mul_f32 v{84+r}, v{84+r}, v92")
        for p in range(4): a(f"v_cvt_pk_bf16_f32 v{96+4*c+p}, v{84+7-2*p}, v{84+6-2*p}")
        a(f"ds_write_b128 v8, v[{96+4*c}:{99+4*c}] offset:{c*144}")
    a(f"s_mul_i32 s47, s20, {UR_STRIDE}\nv_mov_b32 v70, 0\nv_mov_b32 v71, 0\nv_lshlrev_b32 v7, 3, v2\nv_add_u32 v7, s47, v7\nds_write_b64 v7, v[70:71] offset:4096")
    a("s_waitcnt lgkmcnt(0)\ns_barrier")
    a(f"s_mul_i32 s64, s64, 0x9e3779b1\ns_add_u32 s64, s64, 0x7f4a7c15\ns_mov_b32 s65, {WS_FLG}")
    a("s_cmp_ge_u32 s20, 2\ns_cbranch_scc1 L_w1s")
    a(f"v_lshrrev_b32 v8, 3, v0\nv_mul_u32_u24 v8, 144, v8\nv_and_b32 v9, 7, v0\nv_lshl_add_u32 v8, v9, 4, v8\nv_add_u32 v8, {KVL}, v8\nv_lshlrev_b32 v9, 4, v0")
    a(f"s_sub_u32 s18, 31, s59\ns_lshl_b32 s18, s18, 17\ns_lshl_b32 s19, s58, 14\ns_add_u32 s18, s18, s19\ns_add_u32 s18, s18, {WS_UR}")
    for it in range(8): a(f"ds_read_b128 v[{16+4*it}:{19+4*it}], v8 offset:{it*16*144}")
    for it in range(8):
        a(f"s_waitcnt lgkmcnt({7-it})\nbuffer_store_dwordx4 v[{16+4*it}:{19+4*it}], v9, s[32:35], s18 offen offset:{(it&1)*2048} sc1")
        if it&1: a("s_add_u32 s18, s18, 4096")
    a("s_lshl_b32 s73, s58, 8\ns_lshl_b32 s72, s59, 2\ns_add_u32 s72, s72, s73")
    signal(a,0,"s72",1); stamp(a)
    wait(a,0,"s73",112); stamp(a)
    a("s_branch L_cv\nL_w1s:\ns_barrier")
    a(f"s_mul_i32 s48, s48, {2*HP_STRIDE}\ns_add_u32 s48, s48, {HP0}\nv_add_u32 v9, s48, v3\ns_waitcnt vmcnt(0)")
    for i in range(7): a(f"v_mov_b32 v{116+i}, 0")
    for cc in range(2):
        for it in range(4):
            b=RL+16*cc+4*it; o=56+4*it
            a(f"ds_write_b128 v9, v[{b}:{b+3}] offset:{cc*HP_STRIDE+32+it*1024}")
            a(f"v_alignbit_b32 v{o}, v{b+1}, v{b}, 16\nv_alignbit_b32 v{o+1}, v{b+2}, v{b+1}, 16\nv_alignbit_b32 v{o+2}, v{b+3}, v{b+2}, 16\nv_alignbit_b32 v{o+3}, v{RL+32+4*cc+it}, v{b+3}, 16")
            a(f"ds_write_b128 v9, v[{o}:{o+3}] offset:{cc*HP_STRIDE+HP_C1+32+it*1024}")
        h=cc*HP_STRIDE
        a(f"v_lshlrev_b32 v123, 16, v{RL+16*cc}\ns_mov_b64 exec, 1\nds_write_b128 v9, v[116:119] offset:{h}\nds_write_b128 v9, v[116:119] offset:{h+16}\nds_write_b128 v9, v[116:119] offset:{h+HP_C1}\nds_write_b128 v9, v[120:123] offset:{h+HP_C1+16}\ns_mov_b64 exec, -1\ns_waitcnt lgkmcnt(0)")
    a("s_lshl_b32 s47, s20, 8\ns_add_u32 s47, s47, s2\ns_cmp_ge_u32 s47, 540\ns_cbranch_scc1 L_wj")
    srd(a,28,54,55,7168)
    a(f"v_lshlrev_b32 v8, 2, v2\ns_lshl_b32 s47, s2, 8\nbuffer_load_dword v9, v8, s[28:31], s47 offen\nv_and_b32 v10, 3, v2\nv_lshlrev_b32 v10, 7, v10\nv_and_b32 v11, 60, v2\nv_add_u32 v10, v10, v11\ns_lshl_b32 s47, s2, 9\ns_add_u32 s47, s47, {WS_B1F}")
    a("s_waitcnt vmcnt(0)\nv_lshlrev_b32 v11, 16, v9\nv_and_b32 v12, 0xffff0000, v9\nbuffer_store_dword v11, v10, s[32:35], s47 offen sc1\nbuffer_store_dword v12, v10, s[32:35], s47 offen offset:64 sc1")
    a("L_wj:")
    if W1E: w1l(a)
    a("s_barrier")
    a("L_cv:")
    a(f"s_add_u32 s19, s20, s21\ns_lshl_b32 s19, s19, 7\ns_add_u32 s19, s19, {WS_UR}\ns_mul_i32 s18, s20, {UR_STRIDE}")
    a("v_lshrrev_b32 v4, 3, v2\nv_lshlrev_b32 v4, 17, v4\nv_and_b32 v5, 7, v2\nv_lshl_add_u32 v4, v5, 4, v4")
    for it in range(4): a(f"s_add_u32 m0, s18, {it*1024}\ns_add_u32 s36, s19, {it*(8<<17)}\nbuffer_load_dwordx4 v4, s[32:35], s36 offen sc1 lds")
    if W1E: a("s_cmp_ge_u32 s20, 2\ns_cbranch_scc1 L_e1"); w1l(a); a("L_e1:")
    else: w1l(a)
    lnq(a)
    a(f"s_mul_i32 s47, s20, {UR_STRIDE}\ns_mul_i32 s48, s20, {HP_STRIDE}\ns_add_u32 s48, s48, {HP0}")
    a("s_lshr_b32 s49, s20, 1\ns_cmp_eq_u32 s49, 0\ns_cselect_b32 s49, s44, s45\ns_lshl_b32 s50, s49, 16\ns_and_b32 s49, s49, 0xffff0000\ns_bitcmp1_b32 s20, 0\ns_cselect_b32 s49, s49, s50")
    a("v_add_u32 v5, 1, v112\nv_lshrrev_b32 v5, 1, v5\nv_lshl_add_u32 v5, v113, 2, v5\nv_lshlrev_b32 v5, 2, v5")
    a(f"v_and_b32 v6, 1, v112\nv_xor_b32 v6, 1, v6\nv_mul_u32_u24 v6, {HP_C1}, v6\nv_add3_u32 v5, v5, v6, s48")
    for q in range(1,4): a(f"v_add_u32 v{5+q}, {1024*q}, v5")
    a(f"v_lshlrev_b32 v9, 5, v112\nv_sub_u32 v9, {2*2032-512*7}, v9\nv_lshl_add_u32 v9, v113, 4, v9\nv_add_u32 v9, s47, v9")
    for i in range(32): a(f"v_accvgpr_write_b32 a{i}, 0")
    a("s_waitcnt vmcnt(12)"+("\ns_cmp_lt_u32 s20, 2\ns_cbranch_scc1 L_e2\ns_waitcnt vmcnt(4)\nL_e2:" if W1E else "")); stamp(a,3)
    FA=[128,192]; FB=[160,224]
    def rd(rho,buf):
        L=[]
        for x in range(8):
            L.append(f"ds_read_b128 v[{FB[buf]+4*x}:{FB[buf]+4*x+3}], v9 offset:{512*(7-x)+64*rho}")
            o=(x%2)*128+16*rho
            L.append(f"ds_read2_b32 v[{FA[buf]+4*x}:{FA[buf]+4*x+1}], v{5+x//2} offset0:{o} offset1:{o+1}")
            L.append(f"ds_read2_b32 v[{FA[buf]+4*x+2}:{FA[buf]+4*x+3}], v{5+x//2} offset0:{o+2} offset1:{o+3}")
        return L
    for s in rd(0,0): a(s)
    a("s_mov_b32 s51, 4\nL_cvl:")
    for rho in range(2):
        buf=rho&1; a("s_waitcnt lgkmcnt(0)"); nxt=rd(rho+1,buf^1); n=0
        for aa in range(8):
            for b in range(8-aa):
                J=aa+b
                a(f"{MF} a[{4*J}:{4*J+3}], v[{FA[buf]+4*aa}:{FA[buf]+4*aa+3}], v[{FB[buf]+4*b}:{FB[buf]+4*b+3}], a[{4*J}:{4*J+3}]")
                if n<len(nxt): a(nxt[n]); n+=1
                elif rho==1 and n<len(nxt)+5: a(f"v_add_u32 v{5+n-len(nxt)}, 128, v{5+n-len(nxt)}"); n+=1
    a("s_sub_u32 s51, s51, 1\ns_cmp_lg_u32 s51, 0\ns_cbranch_scc1 L_cvl\ns_waitcnt lgkmcnt(0)")
    if W1B==2: a("s_waitcnt vmcnt(4)"); w1s(a)
    a(f"v_lshlrev_b32 v4, 5, v112\nv_lshl_add_u32 v4, v113, 3, v4\nv_add_u32 v5, s48, v4\nv_sub_u32 v4, {2*2044-512*7}, v4\nv_add_u32 v4, s47, v4")
    for J in range(8): a(f"ds_read_b64 v[{128+2*J}:{129+2*J}], v4 offset:{512*(7-J)}")
    for J in range(8):
        k0=128+2*J
        for r in range(4): a(f"v_accvgpr_read_b32 v{148+r}, a{4*J+r}")
        a(f"s_waitcnt lgkmcnt(7)\nv_and_b32 v144, 0xffff0000, v{k0+1}\nv_lshlrev_b32 v145, 16, v{k0+1}\nv_and_b32 v146, 0xffff0000, v{k0}\nv_lshlrev_b32 v147, 16, v{k0}")
        for r in range(4): a(f"v_fmac_f32 v{148+r}, s49, v{144+r}")
        a(f"v_cvt_pk_bf16_f32 v{152+2*J}, v148, v149\nv_cvt_pk_bf16_f32 v{153+2*J}, v150, v151\nds_write_b64 v5, v[{152+2*J}:{153+2*J}] offset:{512*J}")
    a(f"v_lshlrev_b32 v6, 2, v0\nv_add_u32 v6, {HP0}, v6\ns_waitcnt lgkmcnt(0)\ns_barrier")
    for it in range(4):
        for c in range(4): a(f"ds_read_b32 v{168+4*it+c}, v6 offset:{c*HP_STRIDE+it*1024}")
    a("v_lshrrev_b32 v7, 2, v0\nv_lshlrev_b32 v7, 14, v7\nv_and_b32 v8, 3, v0\nv_lshl_add_u32 v7, v8, 4, v7\ns_lshl_b32 s50, s21, 4")
    for it in range(4):
        b=168+4*it; o=184+4*it
        a(f"s_waitcnt lgkmcnt({12-4*it})\nv_perm_b32 v{o}, v{b+1}, v{b}, s68\nv_perm_b32 v{o+1}, v{b+3}, v{b+2}, s68\nv_perm_b32 v{o+2}, v{b+1}, v{b}, s69\nv_perm_b32 v{o+3}, v{b+3}, v{b+2}, s69")
        a(f"buffer_store_dwordx4 v[{o}:{o+3}], v7, s[32:35], s50 offen sc1\ns_add_u32 s50, s50, {64*16384}")
def w1s(a):
    a("s_lshl_b32 s46, s20, 8\ns_add_u32 s46, s46, s2\ns_cmp_ge_u32 s46, 896\ns_cbranch_scc1 L_we")
    a(f"s_mul_i32 s46, s22, {14*1024}\ns_add_u32 s46, s46, {WS_W1F}\ns_lshl_b32 s23, s23, 3")
    for x in range(8):
        o=200+4*x; b=80
        a(f"s_add_u32 s36, s23, {x}\ns_mul_i32 s37, s36, 4682\ns_lshr_b32 s37, s37, 16\ns_mul_i32 s37, s37, {32*14-14}\ns_add_u32 s36, s36, s37\ns_lshl_b32 s36, s36, 10\ns_add_u32 s36, s36, s46")
        for p in range(4): a(f"v_perm_b32 v{o+p}, v{b+4*(2*p+1)+x//2}, v{b+4*(2*p)+x//2}, s{68+(x&1)}")
        a(f"buffer_store_dwordx4 v[{o}:{o+3}], v3, s[32:35], s36 offen sc1")
    a("L_we:")
X=32
def stats(a, off):
    a(f"v_pk_add_f32 v[28:29], v[{X}:{X+1}], v[{X+2}:{X+3}]\nv_pk_mul_f32 v[30:31], v[{X}:{X+1}], v[{X}:{X+1}]")
    for e in range(2,32,2):
        if e>2: a(f"v_pk_add_f32 v[28:29], v[28:29], v[{X+e}:{X+e+1}]")
        a(f"v_pk_fma_f32 v[30:31], v[{X+e}:{X+e+1}], v[{X+e}:{X+e+1}], v[30:31]")
    a("v_add_f32 v28, v28, v29\nv_add_f32 v29, v30, v31")
    a("s_nop 1\nv_permlane32_swap_b32 v28, v29\ns_nop 1\nv_add_f32 v28, v28, v29\nv_mov_b32 v29, v28\ns_nop 1\nv_permlane16_swap_b32 v28, v29\ns_nop 1\nv_add_f32 v28, v28, v29\ns_nop 1")
    a("v_add_f32_dpp v28, v28, v28 row_ror:8 row_mask:0xf bank_mask:0xf")
    a(f"ds_write_b32 v25, v28 offset:{off}\ns_waitcnt lgkmcnt(0)\ns_barrier\nds_read_b128 v[132:135], v24 offset:{off}\nds_read_b128 v[136:139], v24 offset:{off+16}")
    a("s_mov_b32 s54, 0x3a800000\ns_mov_b32 s55, 0x3727c5ac\ns_waitcnt lgkmcnt(0)")
    a("v_add_f32 v132, v132, v133\nv_add_f32 v134, v134, v135\nv_add_f32 v136, v136, v137\nv_add_f32 v138, v138, v139\nv_add_f32 v132, v132, v134\nv_add_f32 v136, v136, v138")
    a("v_mul_f32 v132, s54, v132\nv_mul_f32 v136, s54, v136\nv_fma_f32 v136, -v132, v132, v136\nv_max_f32 v136, 0, v136\nv_add_f32 v136, s55, v136\nv_rsq_f32 v136, v136\ns_nop 0\nv_mul_f32 v132, -v132, v136\nv_mov_b32 v137, v136\nv_mov_b32 v133, v132")
def g1_pre(a):
    g1_setup(a)
    a("s_mov_b32 s44, 0\ns_and_b32 s21, s20, 1\ns_lshr_b32 s22, s20, 1")
    a(f"v_lshrrev_b32 v4, 4, v2\nv_lshlrev_b32 v4, 4, v4\ns_mul_i32 s23, s17, 896\ns_mul_i32 s24, s22, 448\ns_add_u32 s23, s23, s24\ns_add_u32 s23, s23, {WS_B1F}")
    for i in range(7): a(f"buffer_load_dwordx4 v[{104+4*i}:{107+4*i}], v4, s[32:35], s23 offen offset:{64*i}")
def g1_w(a):
    a(f"s_add_u32 s43, s43, {3*28672}\ns_cmp_eq_u32 s20, 0\ns_cbranch_scc1 L_gw\ns_sub_u32 s46, s20, 1\ns_mul_i32 s47, s46, 28672\ns_mul_i32 s48, s17, 458752\ns_add_u32 s47, s47, s48\ns_add_u32 s47, s47, {WS_W1F}\ns_mul_i32 s46, s46, {ST}")
    for c in range(7):
        a(f"s_add_u32 m0, s46, {16384+c*4096}\ns_add_u32 s48, s47, {c*4096}")
        for i in range(4): a(f"buffer_load_dwordx4 v3, s[32:35], s48 offen offset:{i*1024} lds")
    a("L_gw:")
def flag8(a,ph,n,cond):
    a(f"{cond}\ns_cbranch_scc1 {n}\ns_add_u32 s66, s70, {WS_FLG+ph*0x4000}\nv_mov_b32 v12, s64\nv_lshlrev_b32 v13, 10, v2\ns_mov_b64 exec, 0xff\nbuffer_store_dword v12, v13, s[32:35], s66 offen sc1\ns_mov_b64 exec, -1\n{n}:")
def main():
    a=Asm()
    a("s_cmp_ge_u32 s2, 256\ns_cbranch_scc1 L_end\ns_mov_b32 s76, 0"); stamp(a)
    tilemap(a,4,8); a("s_lshl_b32 s70, s16, 4\ns_add_u32 s70, s70, s17\ns_lshl_b32 s70, s70, 2\ns_and_b32 s77, s2, 7\ns_lshl_b32 s77, s77, 10\ns_lshl_b32 s79, s16, 8\ns_lshl_b32 s78, s17, 2\ns_add_u32 s78, s78, s79\ns_and_b32 s71, s78, 0xffe0")
    a(f"s_mov_b32 s60, 0\ns_mov_b32 s61, {WS_XN[0]}\ns_mov_b32 s62, {WS_UR}\ns_mov_b32 s63, {WS_H[0]}")
    front(a)
    if W1B==1: a("s_waitcnt vmcnt(8)"); w1s(a)
    stamp(a)
    signal(a,1,"s70","0xff"); stamp(a)
    a("s_cmp_eq_u32 s20, 0\ns_cbranch_scc1 L_w2le"); w2l(a,"L_w2le"); a("L_w2le:"); unpack(a,X,64,16); stats(a,0)
    for i in range(64): a(f"v_accvgpr_write_b32 a{i}, 0")
    a("s_waitcnt vmcnt(32)"); wait(a,1,"s77",1008); stamp(a)
    for i in range(4):
        for hh in range(2): a(f"buffer_load_dwordx2 v[{80+4*i+2*hh}:{81+4*i+2*hh}], v15, s[32:35], s52 offen offset:{i*1024+hh*64} sc1")
    a("s_cmp_lg_u32 s20, 0\ns_cbranch_scc1 L_w2m"); w2l(a,"L_w2m"); g1_pre(a)
    a("s_waitcnt vmcnt(39)\ns_branch L_w2n\nL_w2m:"); g1_pre(a); a("s_waitcnt vmcnt(7)\nL_w2n:")
    for p in range(16): a(f"v_accvgpr_write_b32 a{128+p}, v{80+p}")
    a("L_lnc:"); stamp(a)
    for p in range(16):
        a(f"v_lshlrev_b32 v28, 16, v{80+p}\nv_and_b32 v29, 0xffff0000, v{80+p}\nv_pk_fma_f32 v[30:31], v[{X+2*p}:{X+2*p+1}], v[136:137], v[132:133]\nv_pk_fma_f32 v[{X+2*p}:{X+2*p+1}], v[30:31], v[28:29], v[{X+2*p}:{X+2*p+1}]\nv_cvt_pk_bf16_f32 v{64+p}, v{X+2*p}, v{X+2*p+1}")
    a("s_add_u32 s52, s52, s62")
    stats(a,256)
    for i in range(4):
        for e in range(8*i,8*i+8,2): a(f"v_pk_fma_f32 v[{X+e}:{X+e+1}], v[{X+e}:{X+e+1}], v[136:137], v[132:133]")
        for p in range(4*i,4*i+4): a(f"v_cvt_pk_bf16_f32 v{80+p}, v{X+2*p}, v{X+2*p+1}")
        a(f"buffer_store_dwordx4 v[{80+4*i}:{83+4*i}], v26, s[32:35], s53 offen sc1\ns_add_u32 s53, s53, 16384")
    for p in range(16): a(f"v_accvgpr_write_b32 a{240+p}, v{64+p}")
    a("s_waitcnt vmcnt(4)")
    for i in range(7):
        for j in range(4):
            for r in (0,2): a(f"v_pk_mov_b32 v[{132+4*(4*i+j)+r}:{133+4*(4*i+j)+r}], v[{104+4*i+r}:{105+4*i+r}], v[{104+4*i+r}:{105+4*i+r}] op_sel:[0,1]")
    stamp(a); signal(a,2,"s78",1); stamp(a); g1_w(a)
    wait(a,2,"s79",48); stamp(a)
    g1_body(a,"g1",pre=lambda: w2s(a), mega=lambda: a(f"s_or_b32 s66, s60, s20\ns_cmp_lg_u32 s66, 0\ns_cbranch_scc1 L_w2f\ns_add_u32 s66, s70, {WS_FLG+8*0x4000}\nv_mov_b32 v12, s64\nv_lshlrev_b32 v13, 10, v2\ns_mov_b64 exec, 0xff\nbuffer_store_dword v12, v13, s[32:35], s66 offen sc1\ns_mov_b64 exec, -1\nL_w2f:"))
    a("s_cmp_lg_u32 s60, 0\ns_cbranch_scc1 L_w2g"); wait(a,8,"s77",1008); a("L_w2g:")
    stamp(a); signal(a,3,"s78",1); stamp(a)
    g2_body(a,"g2",mega=lambda: (wait(a,3,"s71",16), stamp(a)))
    stamp(a)
    a("s_branch L_fin\nL_g2e:"); stamp(a)
    a(f"s_mov_b32 s60, 1\ns_mov_b32 s61, {WS_XN[1]}\ns_mov_b32 s63, {WS_H[1]}")
    g1_pre(a); ln_addr(a)
    for p in range(16): a(f"v_accvgpr_read_b32 v{80+p}, a{128+p}\nv_accvgpr_read_b32 v{64+p}, a{240+p}")
    unpack(a,X,64,16)
    signal(a,4,"s78",1); stamp(a)
    a(f"s_or_b32 s54, s2, s20\ns_cmp_lg_u32 s54, 0\ns_cbranch_scc1 L_nn\nv_mov_b32 v12, s64\nv_mov_b32 v13, 0\ns_mov_b32 s54, {WS_NONCE}\ns_mov_b64 exec, 1\nbuffer_store_dword v12, v13, s[32:35], s54 offen sc1\ns_mov_b64 exec, -1\nL_nn:")
    wait(a,4,"s79",48); stamp(a)
    a(f"s_add_u32 s54, s52, {WS_UR}\ns_add_u32 s55, s52, {WS_Y}\ns_add_u32 s65, s65, {3*0x4000}")
    for i in range(4):
        for k in range(2): a(f"buffer_load_dwordx4 v[{140+16*k+4*i}:{143+16*k+4*i}], v14, s[32:35], s{54+k} offen offset:{128*i} sc1")
    for i in range(64): a(f"v_accvgpr_write_b32 a{i}, 0")
    for p in range(16):
        if p%4==0: a(f"s_waitcnt vmcnt({6-p//2})")
        a(f"v_lshlrev_b32 v28, 16, v{140+p}\nv_and_b32 v29, 0xffff0000, v{140+p}\nv_lshlrev_b32 v30, 16, v{156+p}\nv_and_b32 v31, 0xffff0000, v{156+p}\nv_pk_add_f32 v[28:29], v[28:29], v[30:31]")
        a(f"v_pk_add_f32 v[{X+2*p}:{X+2*p+1}], v[28:29], v[{X+2*p}:{X+2*p+1}]")
    stats(a,0)
    a("s_branch L_lnc\nL_fin:")
    if STAMP:
        a("s_waitcnt vmcnt(0)"); stamp(a)
        a(f"v_lshlrev_b32 v2, 2, v0\ns_lshl_b32 s74, s2, 10\ns_add_u32 s74, s74, {WS_DBG}\nv_writelane_b32 v1, s76, 63\nbuffer_store_dword v1, v2, s[32:35], s74 offen")
    a("L_end:\ns_endpgm")
    N="interleave_layers__ssm_conv_h3__dense_activation_squared_relu__prompt"
    hdr="".join(l for l in open(f"cdna_kernels/{N}.s.ref").readlines()[:15])
    out=sys.argv[1] if len(sys.argv)>1 else f"cdna_kernels/{N}.s"
    t=assemble_file([(N+"_kernel",256,256,LN_LDS+1024)],[(N+"_kernel",a.text(),kernel_desc(N+"_kernel",512,256))])
    if not os.environ.get("LIST"): t=t.replace(f"kernel={N}_kernel ","")
    if os.environ.get("NT"):
        import re
        i=t.index("L_lnc:"); t=re.sub(r"(buffer_load_\S+ .*s\[(?:40:43|24:27|28:31)\].*)\n", r"\1 nt\n", t[:i])+t[i:]
    open(out,"w").write(hdr+t)
main()
```

```python
import sys
from common import *
from k_conv import *
from k_gemm import *
WS_FLG=0x4D00000; WS_NONCE=0x4D80000
LN_LDS=3*ST
W1E=int(os.environ.get("W1E","0"))
HL=int(os.environ.get("HL","0"))
TW=int(os.environ.get("TW","0"))
W1B=int(os.environ.get("W1B","2"))
import k_gemm
def stamp(a,i=0):
    if STAMP: a("s_memrealtime s[74:75]\ns_waitcnt lgkmcnt(0)\ns_mov_b32 m0, s76\ns_add_u32 s76, s76, 1\nv_writelane_b32 v1, s74, m0")
k_gemm.stamp=stamp
def signal(a, ph, off, ex):
    a(f"s_add_u32 s66, {off}, s65\ns_add_u32 s66, s66, {ph*0x4000}\nv_mov_b32 v12, s64\nv_lshlrev_b32 v13, 10, v2")
    a("s_waitcnt vmcnt(0)\ns_barrier")
    n=f"sg{len(a.l)}"
    a(f"s_cmp_lg_u32 s20, 0\ns_cbranch_scc1 L_{n}\ns_mov_b64 exec, {ex}\nbuffer_store_dword v12, v13, s[32:35], s66 offen sc1\ns_mov_b64 exec, -1\nL_{n}:")
def wait(a, ph, idr, msk):
    n=f"wt{len(a.l)}"
    a(f"s_cmp_lg_u32 s20, 0\ns_cbranch_scc1 L_{n}d")
    a(f"s_add_u32 s66, {idr}, s65\ns_add_u32 s66, s66, {ph*0x4000}\nv_and_b32 v13, {msk}, v3")
    a(f"s_mov_b32 s67, 0x40000\nL_{n}:")
    a("buffer_load_dwordx4 v[8:11], v13, s[32:35], s66 offen sc1\ns_waitcnt vmcnt(0)\nv_xor_b32 v8, s64, v8\nv_xor_b32 v9, s64, v9\nv_xor_b32 v10, s64, v10\nv_xor_b32 v11, s64, v11\nv_or3_b32 v8, v8, v9, v10\nv_or_b32 v12, v8, v11\nv_cmp_ne_u32 vcc, 0, v12")
    a(f"s_cmp_eq_u64 vcc, 0\ns_cbranch_scc1 L_{n}d\ns_sub_u32 s67, s67, 1\ns_cmp_lg_u32 s67, 0\ns_cbranch_scc1 L_{n}\nL_{n}d:\ns_barrier")
def unpack(a,dst,src,n):
    for p in range(n): a(f"v_lshlrev_b32 v{dst+2*p}, 16, v{src+p}\nv_and_b32 v{dst+2*p+1}, 0xffff0000, v{src+p}")

def ln_addr(a):
    a("v_and_b32 v27, 7, v2\nv_lshrrev_b32 v28, 3, v2\ns_lshl_b32 s52, s20, 9\nv_lshlrev_b32 v14, 11, v27\nv_lshl_add_u32 v14, v28, 4, v14\nv_add_u32 v14, s52, v14")
    a("s_lshl_b32 s52, s20, 12\nv_lshlrev_b32 v15, 7, v28\nv_lshl_add_u32 v15, v27, 3, v15\nv_add_u32 v15, s52, v15")
    a(f"s_lshl_b32 s52, s20, 2\nv_lshlrev_b32 v24, 5, v27\nv_add_u32 v24, {LN_LDS}, v24\nv_lshrrev_b32 v25, 5, v2\nv_lshl_add_u32 v25, v25, 4, v24\nv_add_u32 v25, s52, v25")
    a("s_lshl_b32 s52, s20, 16\nv_lshrrev_b32 v26, 2, v28\nv_lshlrev_b32 v26, 13, v26\nv_and_b32 v28, 3, v28\nv_lshl_add_u32 v26, v28, 8, v26\nv_lshl_add_u32 v26, v27, 4, v26\nv_add_u32 v26, s52, v26")
    a("s_lshl_b32 s53, s16, 18\ns_lshr_b32 s52, s17, 1\ns_lshl_b32 s52, s52, 10\ns_add_u32 s53, s53, s52\ns_and_b32 s52, s17, 1\ns_lshl_b32 s52, s52, 7\ns_add_u32 s53, s53, s52\ns_add_u32 s53, s53, s61")
    a("s_lshl_b32 s52, s16, 4\ns_add_u32 s52, s52, s17\ns_lshl_b32 s52, s52, 14")
def lnq(a):
    a("s_load_dwordx2 s[4:5], s[0:1], 0"); ln_addr(a); a("s_waitcnt lgkmcnt(0)"); srd(a,24,4,5,1<<22)
    for i in range(4): a(f"buffer_load_dwordx4 v[{64+4*i}:{67+4*i}], v14, s[24:27], s52 offen offset:{128*i}")
def w1l(a):
    srd(a,28,52,53,3584*2048)
    a(f"s_lshl_b32 s46, s20, 8\ns_add_u32 s46, s46, s2\ns_cmp_ge_u32 s46, 896\ns_cselect_b32 s30, 0, s30")
    a(f"s_and_b32 s22, s2, 31\ns_lshr_b32 s23, s46, 5\ns_mul_i32 s46, s22, {32*7168}\ns_lshl_b32 s47, s23, 8\ns_add_u32 s46, s46, s47")
    a(f"v_mul_u32_u24 v114, {8*7168}, v113\nv_lshl_add_u32 v114, v112, 4, v114")
    for t in range(8): a(f"s_add_u32 s47, s46, {t*7168}\nbuffer_load_dwordx4 v[{80+4*t}:{83+4*t}], v114, s[28:31], s47 offen")
def w2l(a,n):
    srd(a,28,56,57,3584*2048)
    a("s_lshl_b32 s72, s20, 8\ns_add_u32 s72, s72, s2\ns_lshr_b32 s72, s72, 3")
    a("s_lshr_b32 s46, s72, 2\ns_lshl_b32 s46, s46, 18\ns_and_b32 s47, s72, 3\ns_lshl_b32 s47, s47, 12\ns_add_u32 s46, s46, s47\ns_lshl_b32 s47, s58, 8\ns_add_u32 s46, s46, s47")
    a("v_lshlrev_b32 v114, 16, v113\nv_lshl_add_u32 v114, v112, 2, v114")
    a(f"s_cmp_ge_u32 s72, 112\ns_cbranch_scc1 {n}")
    for t in range(8):
        a(f"s_add_u32 s47, s46, {(8*(t&3)+(t>>2))*2048}")
        for hq in range(4): a(f"buffer_load_dword a{144+16*(hq//2)+2*t+(hq&1)}, v114, s[28:31], s47 offen offset:{64*hq}")
def w2s(a):
    a("s_cmp_ge_u32 s72, 112\ns_cbranch_scc1 L_w2se")
    for t in range(32): a(f"v_accvgpr_read_b32 v{16+t}, a{144+t}")
    a(f"s_mul_i32 s46, s58, {2*112*4096}\ns_lshl_b32 s47, s72, 12\ns_add_u32 s46, s46, s47\ns_add_u32 s46, s46, {WS_W2F}\ns_mov_b32 s72, 112")
    for hf in range(2):
        for x in range(4):
            o=48+16*hf+4*x; b=16+16*hf
            for p in range(4): a(f"v_perm_b32 v{o+p}, v{b+2*(2*p+1)+x//2}, v{b+2*(2*p)+x//2}, s{68+(x&1)}")
            a(f"buffer_store_dwordx4 v[{o}:{o+3}], v3, s[32:35], s46 offen offset:{x*1024} sc1")
        a(f"s_add_u32 s46, s46, {112*4096}")
    a("s_waitcnt vmcnt(12)\ns_branch L_w2sf\nL_w2se:\ns_cmp_eq_u32 s60, 0\ns_cbranch_scc1 L_x1k")
    for i in range(4): a(f"buffer_store_dwordx4 v[{64+4*i}:{67+4*i}], v14, s[32:35], s52 offen offset:{128*i} sc1")
    a("s_waitcnt vmcnt(8)\ns_branch L_w2sf\nL_x1k:\ns_waitcnt vmcnt(4)\nL_w2sf:")
def front(a):
    a("s_load_dwordx4 s[4:7], s[0:1], 8\ns_load_dwordx4 s[8:11], s[0:1], 24\ns_load_dwordx2 s[12:13], s[0:1], 40\ns_load_dwordx2 s[14:15], s[0:1], 104\ns_load_dwordx4 s[52:55], s[0:1], 56\ns_load_dwordx2 s[56:57], s[0:1], 72")
    a("v_lshrrev_b32 v4, 6, v0\nv_and_b32 v2, 63, v0\nv_lshlrev_b32 v3, 4, v2\nv_readfirstlane_b32 s20, v4")
    a("s_and_b32 s58, s2, 7\ns_lshr_b32 s59, s2, 3\nv_and_b32 v124, 31, v0\nv_lshrrev_b32 v7, 5, v0")
    a("s_lshl_b32 s18, s59, 17\nv_lshlrev_b32 v9, 14, v7\nv_lshl_add_u32 v9, v124, 3, v9\nv_add_u32 v9, s18, v9\ns_lshl_b32 s19, s58, 8")
    a("v_subrev_u32 v4, 6144, v9\nv_and_b32 v4, 0x7fffffff, v4\nv_lshlrev_b32 v6, 5, v124\ns_lshl_b32 s36, s58, 10")
    a("s_waitcnt lgkmcnt(0)")
    srd(a,40,4,5,1<<22); srd(a,24,6,7,1<<22); srd(a,28,8,9,8192); srd(a,32,14,15,WS_SIZE)
    for r in range(3): a(f"v_add_u32 v5, {r*2048}, v4\nbuffer_load_dwordx2 v[{10+2*r}:{11+2*r}], v5, s[40:43], s19 offen")
    for r in range(8):
        if r%2==0: a(f"v_add_u32 v5, {r*2048}, v9")
        a(f"buffer_load_dwordx2 v[{16+2*r}:{17+2*r}], v5, s[40:43], s19 offen offset:{(r%2)*2048}")
        a(f"buffer_load_dwordx2 v[{32+2*r}:{33+2*r}], v5, s[24:27], s19 offen offset:{(r%2)*2048}")
    a("buffer_load_dwordx4 v[48:51], v6, s[28:31], s36 offen\nbuffer_load_dwordx4 v[52:55], v6, s[28:31], s36 offen offset:16")
    a(f"s_add_u32 s4, s14, {WS_NONCE}\ns_addc_u32 s5, s15, 0\ns_load_dword s64, s[4:5], 0")
    a("s_lshl_b32 s21, s58, 7\ns_lshl_b32 s18, s59, 2\ns_add_u32 s21, s21, s18\ns_lshl_b32 s18, s21, 1\ns_add_u32 s12, s12, s18\ns_addc_u32 s13, s13, 0\ns_load_dwordx2 s[44:45], s[12:13], 0")
    a("s_mov_b32 s68, 0x05040100\ns_mov_b32 s69, 0x07060302\nv_and_b32 v112, 15, v2\nv_lshrrev_b32 v113, 4, v2")
    RL=128
    a("s_cmp_lt_u32 s20, 2\ns_cbranch_scc1 L_w1l\ns_sub_u32 s48, s20, 2")
    if HL: a("s_waitcnt vmcnt(0)")
    srd(a,28,10,11,1<<22)
    a("s_lshl_b32 s46, s48, 1\ns_add_u32 s46, s46, s21\ns_lshl_b32 s46, s46, 12")
    for cc in range(2):
        for it in range(4):
            a(f"buffer_load_dwordx4 v[{RL+16*cc+4*it}:{RL+3+16*cc+4*it}], v3, s[28:31], s46 offen offset:{it*1024}")
            a(f"buffer_load_dword v{RL+32+4*cc+it}, v3, s[28:31], s46 offen offset:{it*1024+16}")
        a("s_add_u32 s46, s46, 4096")
    if TW:
        a(f"s_cmp_ge_u32 s2, {TW}\ns_cbranch_scc1 L_tw\ns_cmp_lg_u32 s20, 3\ns_cbranch_scc1 L_tw\ns_load_dwordx2 s[6:7], s[0:1], 0\ns_lshl_b32 s46, s2, 8\nv_lshlrev_b32 v126, 16, v2\nv_add_u32 v126, s46, v126\nv_lshl_add_u32 v127, v2, 16, v126")
        a(f"s_mov_b32 s46, {WS_UR}\nbuffer_load_dword v125, v126, s[32:35], s46 offen sc1\nbuffer_load_dword v125, v126, s[32:35], 0 offen sc1")
        srd(a,28,52,53,3584*2048); a("buffer_load_dword v125, v127, s[28:31], 0 offen")
        srd(a,28,56,57,3584*2048); a("buffer_load_dword v125, v127, s[28:31], 0 offen\ns_waitcnt lgkmcnt(0)")
        srd(a,28,6,7,1<<22); a("buffer_load_dword v125, v126, s[28:31], 0 offen\ns_waitcnt vmcnt(21)\ns_branch L_kv\nL_tw:")
    a("s_waitcnt vmcnt(16)\ns_branch L_kv")
    a("L_w1l:\ns_waitcnt vmcnt(0)")
    WA=64
    a("L_kv:"); stamp(a,1)
    KVL=65536
    a(f"v_mul_u32_u24 v8, 576, v124\nv_lshlrev_b32 v9, 4, v7\nv_sub_u32 v8, v8, v9\nv_add_u32 v8, {KVL+112}, v8")
    unpack(a,56,48,8)
    for c in range(4):
        for r in range(11):
            src=10+2*r+c//2
            a(f"v_lshlrev_b32 v{72+r}, 16, v{src}" if c%2==0 else f"v_and_b32 v{72+r}, 0xffff0000, v{src}")
        for r in range(8):
            src=32+2*r+c//2
            a(f"v_mul_f32 v{84+r}, v{56+4*c+3}, v{72+r}")
            a(f"v_lshlrev_b32 v{92}, 16, v{src}" if c%2==0 else f"v_and_b32 v{92}, 0xffff0000, v{src}")
            a(f"v_fmac_f32 v{84+r}, v{56+4*c+2}, v{73+r}\nv_fmac_f32 v{84+r}, v{56+4*c+1}, v{74+r}\nv_fmac_f32 v{84+r}, v{56+4*c}, v{75+r}")
            a(f"v_mul_f32 v{84+r}, v{84+r}, v92")
        for p in range(4): a(f"v_cvt_pk_bf16_f32 v{96+4*c+p}, v{84+7-2*p}, v{84+6-2*p}")
        a(f"ds_write_b128 v8, v[{96+4*c}:{99+4*c}] offset:{c*144}")
    a(f"s_mul_i32 s47, s20, {UR_STRIDE}\nv_mov_b32 v70, 0\nv_mov_b32 v71, 0\nv_lshlrev_b32 v7, 3, v2\nv_add_u32 v7, s47, v7\nds_write_b64 v7, v[70:71] offset:4096")
    a("s_waitcnt lgkmcnt(0)\ns_barrier")
    a(f"s_mul_i32 s64, s64, 0x9e3779b1\ns_add_u32 s64, s64, 0x7f4a7c15\ns_mov_b32 s65, {WS_FLG}")
    a("s_cmp_ge_u32 s20, 2\ns_cbranch_scc1 L_w1s")
    a(f"v_lshrrev_b32 v8, 3, v0\nv_mul_u32_u24 v8, 144, v8\nv_and_b32 v9, 7, v0\nv_lshl_add_u32 v8, v9, 4, v8\nv_add_u32 v8, {KVL}, v8\nv_lshlrev_b32 v9, 4, v0")
    a(f"s_sub_u32 s18, 31, s59\ns_lshl_b32 s18, s18, 17\ns_lshl_b32 s19, s58, 14\ns_add_u32 s18, s18, s19\ns_add_u32 s18, s18, {WS_UR}")
    for it in range(8): a(f"ds_read_b128 v[{16+4*it}:{19+4*it}], v8 offset:{it*16*144}")
    for it in range(8):
        a(f"s_waitcnt lgkmcnt({7-it})\nbuffer_store_dwordx4 v[{16+4*it}:{19+4*it}], v9, s[32:35], s18 offen offset:{(it&1)*2048} sc1")
        if it&1: a("s_add_u32 s18, s18, 4096")
    a("s_lshl_b32 s73, s58, 8\ns_lshl_b32 s72, s59, 2\ns_add_u32 s72, s72, s73")
    signal(a,0,"s72",1); stamp(a)
    wait(a,0,"s73",112); stamp(a)
    a("s_branch L_cv\nL_w1s:\ns_barrier")
    a(f"s_mul_i32 s48, s48, {2*HP_STRIDE}\ns_add_u32 s48, s48, {HP0}\nv_add_u32 v9, s48, v3\ns_waitcnt vmcnt(0)")
    for i in range(7): a(f"v_mov_b32 v{116+i}, 0")
    for cc in range(2):
        for it in range(4):
            b=RL+16*cc+4*it; o=56+4*it
            a(f"ds_write_b128 v9, v[{b}:{b+3}] offset:{cc*HP_STRIDE+32+it*1024}")
            a(f"v_alignbit_b32 v{o}, v{b+1}, v{b}, 16\nv_alignbit_b32 v{o+1}, v{b+2}, v{b+1}, 16\nv_alignbit_b32 v{o+2}, v{b+3}, v{b+2}, 16\nv_alignbit_b32 v{o+3}, v{RL+32+4*cc+it}, v{b+3}, 16")
            a(f"ds_write_b128 v9, v[{o}:{o+3}] offset:{cc*HP_STRIDE+HP_C1+32+it*1024}")
        h=cc*HP_STRIDE
        a(f"v_lshlrev_b32 v123, 16, v{RL+16*cc}\ns_mov_b64 exec, 1\nds_write_b128 v9, v[116:119] offset:{h}\nds_write_b128 v9, v[116:119] offset:{h+16}\nds_write_b128 v9, v[116:119] offset:{h+HP_C1}\nds_write_b128 v9, v[120:123] offset:{h+HP_C1+16}\ns_mov_b64 exec, -1\ns_waitcnt lgkmcnt(0)")
    a("s_lshl_b32 s47, s20, 8\ns_add_u32 s47, s47, s2\ns_cmp_ge_u32 s47, 540\ns_cbranch_scc1 L_wj")
    srd(a,28,54,55,7168)
    a(f"v_lshlrev_b32 v8, 2, v2\ns_lshl_b32 s47, s2, 8\nbuffer_load_dword v9, v8, s[28:31], s47 offen\nv_and_b32 v10, 3, v2\nv_lshlrev_b32 v10, 7, v10\nv_and_b32 v11, 60, v2\nv_add_u32 v10, v10, v11\ns_lshl_b32 s47, s2, 9\ns_add_u32 s47, s47, {WS_B1F}")
    a("s_waitcnt vmcnt(0)\nv_lshlrev_b32 v11, 16, v9\nv_and_b32 v12, 0xffff0000, v9\nbuffer_store_dword v11, v10, s[32:35], s47 offen sc1\nbuffer_store_dword v12, v10, s[32:35], s47 offen offset:64 sc1")
    a("L_wj:")
    if W1E: w1l(a)
    a("s_barrier")
    a("L_cv:")
    a(f"s_add_u32 s19, s20, s21\ns_lshl_b32 s19, s19, 7\ns_add_u32 s19, s19, {WS_UR}\ns_mul_i32 s18, s20, {UR_STRIDE}")
    a("v_lshrrev_b32 v4, 3, v2\nv_lshlrev_b32 v4, 17, v4\nv_and_b32 v5, 7, v2\nv_lshl_add_u32 v4, v5, 4, v4")
    for it in range(4): a(f"s_add_u32 m0, s18, {it*1024}\ns_add_u32 s36, s19, {it*(8<<17)}\nbuffer_load_dwordx4 v4, s[32:35], s36 offen sc1 lds")
    if W1E: a("s_cmp_ge_u32 s20, 2\ns_cbranch_scc1 L_e1"); w1l(a); a("L_e1:")
    else: w1l(a)
    lnq(a)
    a(f"s_mul_i32 s47, s20, {UR_STRIDE}\ns_mul_i32 s48, s20, {HP_STRIDE}\ns_add_u32 s48, s48, {HP0}")
    a("s_lshr_b32 s49, s20, 1\ns_cmp_eq_u32 s49, 0\ns_cselect_b32 s49, s44, s45\ns_lshl_b32 s50, s49, 16\ns_and_b32 s49, s49, 0xffff0000\ns_bitcmp1_b32 s20, 0\ns_cselect_b32 s49, s49, s50")
    a("v_add_u32 v5, 1, v112\nv_lshrrev_b32 v5, 1, v5\nv_lshl_add_u32 v5, v113, 2, v5\nv_lshlrev_b32 v5, 2, v5")
    a(f"v_and_b32 v6, 1, v112\nv_xor_b32 v6, 1, v6\nv_mul_u32_u24 v6, {HP_C1}, v6\nv_add3_u32 v5, v5, v6, s48")
    for q in range(1,4): a(f"v_add_u32 v{5+q}, {1024*q}, v5")
    a(f"v_lshlrev_b32 v9, 5, v112\nv_sub_u32 v9, {2*2032-512*7}, v9\nv_lshl_add_u32 v9, v113, 4, v9\nv_add_u32 v9, s47, v9")
    for i in range(32): a(f"v_accvgpr_write_b32 a{i}, 0")
    a("s_waitcnt vmcnt(12)"+("\ns_cmp_lt_u32 s20, 2\ns_cbranch_scc1 L_e2\ns_waitcnt vmcnt(4)\nL_e2:" if W1E else "")); stamp(a,3)
    FA=[128,192]; FB=[160,224]
    def rd(rho,buf):
        L=[]
        for x in range(8):
            L.append(f"ds_read_b128 v[{FB[buf]+4*x}:{FB[buf]+4*x+3}], v9 offset:{512*(7-x)+64*rho}")
            o=(x%2)*128+16*rho
            L.append(f"ds_read2_b32 v[{FA[buf]+4*x}:{FA[buf]+4*x+1}], v{5+x//2} offset0:{o} offset1:{o+1}")
            L.append(f"ds_read2_b32 v[{FA[buf]+4*x+2}:{FA[buf]+4*x+3}], v{5+x//2} offset0:{o+2} offset1:{o+3}")
        return L
    for s in rd(0,0): a(s)
    a("s_mov_b32 s51, 4\nL_cvl:")
    for rho in range(2):
        buf=rho&1; a("s_waitcnt lgkmcnt(0)"); nxt=rd(rho+1,buf^1); n=0
        for aa in range(8):
            for b in range(8-aa):
                J=aa+b
                a(f"{MF} a[{4*J}:{4*J+3}], v[{FA[buf]+4*aa}:{FA[buf]+4*aa+3}], v[{FB[buf]+4*b}:{FB[buf]+4*b+3}], a[{4*J}:{4*J+3}]")
                if n<len(nxt): a(nxt[n]); n+=1
                elif rho==1 and n<len(nxt)+5: a(f"v_add_u32 v{5+n-len(nxt)}, 128, v{5+n-len(nxt)}"); n+=1
    a("s_sub_u32 s51, s51, 1\ns_cmp_lg_u32 s51, 0\ns_cbranch_scc1 L_cvl\ns_waitcnt lgkmcnt(0)")
    if W1B==2: a("s_waitcnt vmcnt(4)"); w1s(a)
    a(f"v_lshlrev_b32 v4, 5, v112\nv_lshl_add_u32 v4, v113, 3, v4\nv_add_u32 v5, s48, v4\nv_sub_u32 v4, {2*2044-512*7}, v4\nv_add_u32 v4, s47, v4")
    for J in range(8): a(f"ds_read_b64 v[{128+2*J}:{129+2*J}], v4 offset:{512*(7-J)}")
    for J in range(8):
        k0=128+2*J
        for r in range(4): a(f"v_accvgpr_read_b32 v{148+r}, a{4*J+r}")
        a(f"s_waitcnt lgkmcnt(7)\nv_and_b32 v144, 0xffff0000, v{k0+1}\nv_lshlrev_b32 v145, 16, v{k0+1}\nv_and_b32 v146, 0xffff0000, v{k0}\nv_lshlrev_b32 v147, 16, v{k0}")
        for r in range(4): a(f"v_fmac_f32 v{148+r}, s49, v{144+r}")
        a(f"v_cvt_pk_bf16_f32 v{152+2*J}, v148, v149\nv_cvt_pk_bf16_f32 v{153+2*J}, v150, v151\nds_write_b64 v5, v[{152+2*J}:{153+2*J}] offset:{512*J}")
    a(f"v_lshlrev_b32 v6, 2, v0\nv_add_u32 v6, {HP0}, v6\ns_waitcnt lgkmcnt(0)\ns_barrier")
    for it in range(4):
        for c in range(4): a(f"ds_read_b32 v{168+4*it+c}, v6 offset:{c*HP_STRIDE+it*1024}")
    a("v_lshrrev_b32 v7, 2, v0\nv_lshlrev_b32 v7, 14, v7\nv_and_b32 v8, 3, v0\nv_lshl_add_u32 v7, v8, 4, v7\ns_lshl_b32 s50, s21, 4")
    for it in range(4):
        b=168+4*it; o=184+4*it
        a(f"s_waitcnt lgkmcnt({12-4*it})\nv_perm_b32 v{o}, v{b+1}, v{b}, s68\nv_perm_b32 v{o+1}, v{b+3}, v{b+2}, s68\nv_perm_b32 v{o+2}, v{b+1}, v{b}, s69\nv_perm_b32 v{o+3}, v{b+3}, v{b+2}, s69")
        a(f"buffer_store_dwordx4 v[{o}:{o+3}], v7, s[32:35], s50 offen sc1\ns_add_u32 s50, s50, {64*16384}")
def w1s(a):
    a("s_lshl_b32 s46, s20, 8\ns_add_u32 s46, s46, s2\ns_cmp_ge_u32 s46, 896\ns_cbranch_scc1 L_we")
    a(f"s_mul_i32 s46, s22, {14*1024}\ns_add_u32 s46, s46, {WS_W1F}\ns_lshl_b32 s23, s23, 3")
    for x in range(8):
        o=200+4*x; b=80
        a(f"s_add_u32 s36, s23, {x}\ns_mul_i32 s37, s36, 4682\ns_lshr_b32 s37, s37, 16\ns_mul_i32 s37, s37, {32*14-14}\ns_add_u32 s36, s36, s37\ns_lshl_b32 s36, s36, 10\ns_add_u32 s36, s36, s46")
        for p in range(4): a(f"v_perm_b32 v{o+p}, v{b+4*(2*p+1)+x//2}, v{b+4*(2*p)+x//2}, s{68+(x&1)}")
        a(f"buffer_store_dwordx4 v[{o}:{o+3}], v3, s[32:35], s36 offen sc1")
    a("L_we:")
X=32
def stats(a, off):
    for c,A in ((0,28),(16,16)): a(f"v_pk_add_f32 v[{A}:{A+1}], v[{X+c}:{X+c+1}], v[{X+c+2}:{X+c+3}]\nv_pk_mul_f32 v[{A+2}:{A+3}], v[{X+c}:{X+c+1}], v[{X+c}:{X+c+1}]")
    for e in range(2,16,2):
        for c,A in ((0,28),(16,16)):
            if e>2: a(f"v_pk_add_f32 v[{A}:{A+1}], v[{A}:{A+1}], v[{X+c+e}:{X+c+e+1}]")
            a(f"v_pk_fma_f32 v[{A+2}:{A+3}], v[{X+c+e}:{X+c+e+1}], v[{X+c+e}:{X+c+e+1}], v[{A+2}:{A+3}]")
    a("v_pk_add_f32 v[28:29], v[28:29], v[16:17]\nv_pk_add_f32 v[30:31], v[30:31], v[18:19]")
    a("v_add_f32 v28, v28, v29\nv_add_f32 v29, v30, v31")
    a("s_nop 1\nv_permlane32_swap_b32 v28, v29\ns_nop 1\nv_add_f32 v28, v28, v29\nv_mov_b32 v29, v28\ns_nop 1\nv_permlane16_swap_b32 v28, v29\ns_nop 1\nv_add_f32 v28, v28, v29\ns_nop 1")
    a("v_add_f32_dpp v28, v28, v28 row_ror:8 row_mask:0xf bank_mask:0xf")
    a(f"ds_write_b32 v25, v28 offset:{off}\ns_waitcnt lgkmcnt(0)\ns_barrier\nds_read_b128 v[132:135], v24 offset:{off}\nds_read_b128 v[136:139], v24 offset:{off+16}")
    a("s_mov_b32 s54, 0x3a800000\ns_mov_b32 s55, 0x3727c5ac\ns_waitcnt lgkmcnt(0)")
    a("v_add_f32 v132, v132, v133\nv_add_f32 v134, v134, v135\nv_add_f32 v136, v136, v137\nv_add_f32 v138, v138, v139\nv_add_f32 v132, v132, v134\nv_add_f32 v136, v136, v138")
    a("v_mul_f32 v132, s54, v132\nv_mul_f32 v136, s54, v136\nv_fma_f32 v136, -v132, v132, v136\nv_max_f32 v136, 0, v136\nv_add_f32 v136, s55, v136\nv_rsq_f32 v136, v136\ns_nop 0\nv_mul_f32 v132, -v132, v136\nv_mov_b32 v137, v136\nv_mov_b32 v133, v132")
N=176; YF=208
def norm(a):
    for e in range(0,32,2): a(f"v_pk_fma_f32 v[{N+e}:{N+e+1}], v[{X+e}:{X+e+1}], v[136:137], v[132:133]")
def g1_pre(a):
    g1_setup(a)
    a("s_mov_b32 s44, 0\ns_and_b32 s21, s20, 1\ns_lshr_b32 s22, s20, 1")
    a(f"v_lshrrev_b32 v4, 4, v2\nv_lshlrev_b32 v4, 4, v4\ns_mul_i32 s23, s17, 896\ns_mul_i32 s24, s22, 448\ns_add_u32 s23, s23, s24\ns_add_u32 s23, s23, {WS_B1F}")
    for i in range(7): a(f"buffer_load_dwordx4 v[{104+4*i}:{107+4*i}], v4, s[32:35], s23 offen offset:{64*i}")
def g1_w(a):
    a(f"s_add_u32 s43, s43, {3*28672}\ns_cmp_eq_u32 s20, 0\ns_cbranch_scc1 L_gw\ns_sub_u32 s46, s20, 1\ns_mul_i32 s47, s46, 28672\ns_mul_i32 s48, s17, 458752\ns_add_u32 s47, s47, s48\ns_add_u32 s47, s47, {WS_W1F}\ns_mul_i32 s46, s46, {ST}")
    for c in range(7):
        a(f"s_add_u32 m0, s46, {16384+c*4096}\ns_add_u32 s48, s47, {c*4096}")
        for i in range(4): a(f"buffer_load_dwordx4 v3, s[32:35], s48 offen offset:{i*1024} lds")
    a("L_gw:")
def flag8(a,ph,n,cond):
    a(f"{cond}\ns_cbranch_scc1 {n}\ns_add_u32 s66, s70, {WS_FLG+ph*0x4000}\nv_mov_b32 v12, s64\nv_lshlrev_b32 v13, 10, v2\ns_mov_b64 exec, 0xff\nbuffer_store_dword v12, v13, s[32:35], s66 offen sc1\ns_mov_b64 exec, -1\n{n}:")
def main():
    a=Asm()
    a("s_cmp_ge_u32 s2, 256\ns_cbranch_scc1 L_end\ns_mov_b32 s76, 0"); stamp(a)
    tilemap(a,4,8); a("s_lshl_b32 s70, s16, 4\ns_add_u32 s70, s70, s17\ns_lshl_b32 s70, s70, 2\ns_and_b32 s77, s2, 7\ns_lshl_b32 s77, s77, 10\ns_lshl_b32 s79, s16, 8\ns_lshl_b32 s78, s17, 2\ns_add_u32 s78, s78, s79\ns_and_b32 s71, s78, 0xffe0")
    a(f"s_mov_b32 s60, 0\ns_mov_b32 s61, {WS_XN[0]}\ns_mov_b32 s62, {WS_UR}\ns_mov_b32 s63, {WS_H[0]}")
    front(a)
    if W1B==1: a("s_waitcnt vmcnt(8)"); w1s(a)
    stamp(a)
    signal(a,1,"s70","0xff"); stamp(a)
    a("s_cmp_eq_u32 s20, 0\ns_cbranch_scc1 L_w2le"); w2l(a,"L_w2le"); a("L_w2le:"); unpack(a,X,64,16); stats(a,0); norm(a)
    for i in range(64): a(f"v_accvgpr_write_b32 a{i}, 0")
    a("s_waitcnt vmcnt(32)"); wait(a,1,"s77",1008); stamp(a)
    for i in range(4):
        for hh in range(2): a(f"buffer_load_dwordx2 v[{80+4*i+2*hh}:{81+4*i+2*hh}], v15, s[32:35], s52 offen offset:{i*1024+hh*64} sc1")
    a("s_cmp_lg_u32 s20, 0\ns_cbranch_scc1 L_w2m"); w2l(a,"L_w2m"); g1_pre(a)
    a("s_waitcnt vmcnt(39)\ns_branch L_w2n\nL_w2m:"); g1_pre(a); a("s_waitcnt vmcnt(7)\nL_w2n:")
    unpack(a,YF,80,16)
    a("L_lnc:"); stamp(a)
    for e in range(0,32,2): a(f"v_pk_fma_f32 v[{X+e}:{X+e+1}], v[{N+e}:{N+e+1}], v[{YF+e}:{YF+e+1}], v[{X+e}:{X+e+1}]")
    a("s_add_u32 s52, s52, s62")
    stats(a,256); norm(a)
    for i in range(4):
        for p in range(4): a(f"v_cvt_pk_bf16_f32 v{N+8*i+p}, v{N+8*i+2*p}, v{N+8*i+2*p+1}")
        a(f"buffer_store_dwordx4 v[{N+8*i}:{N+8*i+3}], v26, s[32:35], s53 offen sc1\ns_add_u32 s53, s53, 16384")
    stamp(a); signal(a,2,"s78",1); stamp(a); g1_w(a)
    for p in range(16): a(f"v_cvt_pk_bf16_f32 v{64+p}, v{X+2*p}, v{X+2*p+1}\nv_accvgpr_write_b32 a{128+p}, v{80+p}")
    for p in range(16): a(f"v_accvgpr_write_b32 a{240+p}, v{64+p}")
    for i in range(7):
        for j in range(4):
            for r in (0,2): a(f"v_pk_mov_b32 v[{132+4*(4*i+j)+r}:{133+4*(4*i+j)+r}], v[{104+4*i+r}:{105+4*i+r}], v[{104+4*i+r}:{105+4*i+r}] op_sel:[0,1]")
    wait(a,2,"s79",48); stamp(a)
    g1_body(a,"g1",pre=lambda: w2s(a), mega=lambda: a(f"s_or_b32 s66, s60, s20\ns_cmp_lg_u32 s66, 0\ns_cbranch_scc1 L_w2f\ns_add_u32 s66, s70, {WS_FLG+8*0x4000}\nv_mov_b32 v12, s64\nv_lshlrev_b32 v13, 10, v2\ns_mov_b64 exec, 0xff\nbuffer_store_dword v12, v13, s[32:35], s66 offen sc1\ns_mov_b64 exec, -1\nL_w2f:"))
    a("s_cmp_lg_u32 s60, 0\ns_cbranch_scc1 L_w2g"); wait(a,8,"s77",1008); a("L_w2g:")
    stamp(a); signal(a,3,"s78",1); stamp(a)
    g2_body(a,"g2",mega=lambda: (wait(a,3,"s71",16), stamp(a)))
    stamp(a)
    a("s_branch L_fin\nL_g2e:"); stamp(a)
    a(f"s_mov_b32 s60, 1\ns_mov_b32 s61, {WS_XN[1]}\ns_mov_b32 s63, {WS_H[1]}")
    g1_pre(a); ln_addr(a)
    for p in range(16): a(f"v_accvgpr_read_b32 v{80+p}, a{128+p}\nv_accvgpr_read_b32 v{64+p}, a{240+p}")
    unpack(a,X,64,16); unpack(a,YF,80,16)
    signal(a,4,"s78",1); stamp(a)
    a(f"s_or_b32 s54, s2, s20\ns_cmp_lg_u32 s54, 0\ns_cbranch_scc1 L_nn\nv_mov_b32 v12, s64\nv_mov_b32 v13, 0\ns_mov_b32 s54, {WS_NONCE}\ns_mov_b64 exec, 1\nbuffer_store_dword v12, v13, s[32:35], s54 offen sc1\ns_mov_b64 exec, -1\nL_nn:")
    wait(a,4,"s79",48); stamp(a)
    a(f"s_add_u32 s54, s52, {WS_UR}\ns_add_u32 s55, s52, {WS_Y}\ns_add_u32 s65, s65, {3*0x4000}")
    for i in range(4):
        for k in range(2): a(f"buffer_load_dwordx4 v[{140+16*k+4*i}:{143+16*k+4*i}], v14, s[32:35], s{54+k} offen offset:{128*i} sc1")
    for i in range(64): a(f"v_accvgpr_write_b32 a{i}, 0")
    for p in range(16):
        if p%4==0: a(f"s_waitcnt vmcnt({6-p//2})")
        t=N+4*(p%8)
        a(f"v_lshlrev_b32 v{t}, 16, v{140+p}\nv_and_b32 v{t+1}, 0xffff0000, v{140+p}\nv_lshlrev_b32 v{t+2}, 16, v{156+p}\nv_and_b32 v{t+3}, 0xffff0000, v{156+p}")
        if p%4==3:
            for o in (0,2):
                for q in range(p-3,p+1): a(f"v_pk_add_f32 v[{X+2*q}:{X+2*q+1}], v[{N+4*(q%8)+o}:{N+4*(q%8)+o+1}], v[{X+2*q}:{X+2*q+1}]")
    stats(a,0); norm(a)
    a("s_branch L_lnc\nL_fin:")
    if STAMP:
        a("s_waitcnt vmcnt(0)"); stamp(a)
        a(f"v_lshlrev_b32 v2, 2, v0\ns_lshl_b32 s74, s2, 10\ns_add_u32 s74, s74, {WS_DBG}\nv_writelane_b32 v1, s76, 63\nbuffer_store_dword v1, v2, s[32:35], s74 offen")
    a("L_end:\ns_endpgm")
    NM="interleave_layers__ssm_conv_h3__dense_activation_squared_relu__prompt"
    hdr="".join(l for l in open(f"cdna_kernels/{NM}.s.ref").readlines()[:15])
    out=sys.argv[1] if len(sys.argv)>1 else f"cdna_kernels/{NM}.s"
    t=assemble_file([(NM+"_kernel",256,256,LN_LDS+1024)],[(NM+"_kernel",a.text(),kernel_desc(NM+"_kernel",512,256))])
    if not os.environ.get("LIST"): t=t.replace(f"kernel={NM}_kernel ","")
    if os.environ.get("NT"):
        import re
        i=t.index("L_lnc:"); t=re.sub(r"(buffer_load_\S+ .*s\[(?:40:43|24:27|28:31)\].*)\n", r"\1 nt\n", t[:i])+t[i:]
    open(out,"w").write(hdr+t)
main()
```
